```python
import torch

def _softmax(x, axis=-1):
    return torch.softmax(x, dim=axis)
def _gelu(x):
    return torch.nn.functional.gelu(x, approximate="tanh")
def _silu(x):
    return torch.nn.functional.silu(x)
def _sigmoid(x):
    return torch.sigmoid(x)
def _layernorm(x, axis=-1, eps=1e-5):
    m = x.mean(dim=axis, keepdim=True)
    v = x.var(dim=axis, keepdim=True, unbiased=False)
    return (x - m) / torch.sqrt(v + eps)
def _scatter_add(tgt, idx, src, axis=0):
    return tgt.clone().index_add_(axis, idx, src)
def _segment_sum(src, seg, n):
    out = torch.zeros((n,) + src.shape[1:], dtype=src.dtype)
    return out.index_add_(0, seg, src)
def _pad(x, pw):
    flat = tuple(v for pair in reversed(pw) for v in pair)
    return torch.nn.functional.pad(x, flat)

kernel_name = 'sequential_preLN__ssm_conv_s4d__mixer_s_mlp__prompt'

def setup_inputs():

    _w = (lambda a: (lambda t: t.to(torch.bfloat16) if t.is_floating_point() else t)(torch.as_tensor(a)))
    def _A_setup():
        Bsz, L, D, N = 1, 2048, 512, 128
        return {
            "u": _w((lambda *s: torch.randn(*s, dtype=torch.bfloat16) * 0.05)(Bsz, L, D)),
            "log_A_real": _w((lambda *s: torch.randn(*s, dtype=torch.bfloat16) * 6.4)(D, N) * 0.5),
            "A_imag": _w((lambda *s: torch.randn(*s, dtype=torch.bfloat16) * 0.05)(D, N) * 3.14),
            "C_real": _w((lambda *s: torch.randn(*s, dtype=torch.bfloat16) * 0.05)(D, N) / N ** 0.5),
            "C_imag": _w((lambda *s: torch.randn(*s, dtype=torch.bfloat16) * 0.05)(D, N) / N ** 0.5),
            "log_dt": _w((lambda *s: torch.randn(*s, dtype=torch.bfloat16) * 0.05)(D) * 0.5 - 4.0),
            "D_skip": _w((lambda *s: torch.randn(*s, dtype=torch.bfloat16) * 0.05)(D)),
        }
    _A_in = _A_setup()

    def _B_setup():
        B, S, D, F = 1, 2048, 512, 1376
        return {
            "x":  _w((lambda *s: torch.randn(*s, dtype=torch.bfloat16) * 0.05)(B, S, D)),
            "w1": _w((lambda *s: torch.randn(*s, dtype=torch.bfloat16) * 6.4)(D, D) * (D ** -0.5)),
            "w2": _w((lambda *s: torch.randn(*s, dtype=torch.bfloat16) * 6.4)(D, D) * (D ** -0.5)),
            "w3": _w((lambda *s: torch.randn(*s, dtype=torch.bfloat16) * 6.4)(D, F) * (D ** -0.5)),
            "w4": _w((lambda *s: torch.randn(*s, dtype=torch.bfloat16) * 6.4)(F, D) * (F ** -0.5)),
        }
    _B_in = _B_setup()

    return {
        "A_u": _A_in["u"],
        "A_log_A_real": _A_in["log_A_real"],
        "A_A_imag": _A_in["A_imag"],
        "A_C_real": _A_in["C_real"],
        "A_C_imag": _A_in["C_imag"],
        "A_log_dt": _A_in["log_dt"],
        "A_D_skip": _A_in["D_skip"],
        "B_x": _B_in["x"],
        "B_w1": _B_in["w1"],
        "B_w2": _B_in["w2"],
        "B_w3": _B_in["w3"],
        "B_w4": _B_in["w4"],
    }

def reference(A_u, A_log_A_real, A_A_imag, A_C_real, A_C_imag, A_log_dt, A_D_skip, B_x, B_w1, B_w2, B_w3, B_w4):
    def _A_ref(u, log_A_real, A_imag, C_real, C_imag, log_dt, D_skip):
        L = u.shape[1]
        dt = torch.exp(log_dt)
        A = -torch.exp(log_A_real) + 1j * A_imag
        C = (C_real + 1j * C_imag) * dt[:, None]
        pos = (lambda x, dt: x.to(dt))(torch.arange(L), log_dt.dtype)
        P = torch.exp((A * dt[:, None])[:, :, None] * pos[None, None, :])
        K = 2.0 * torch.einsum("dn,dnl->dl", C, P).real
        L2 = 2 * L
        u_t = (lambda x, *d: x.permute(*d))(u, 0, 2, 1)
        Kf = (lambda x, *a, **k: torch.fft.rfft(x.float(), *a, **k))(K, L2)
        Uf = (lambda x, *a, **k: torch.fft.rfft(x.float(), *a, **k))(u_t, L2)
        y = (lambda x, *a, **k: torch.fft.irfft(x, *a, **k).to(torch.bfloat16))(Uf * Kf[None, :, :], L2)[:, :, :L]
        y = (lambda x, *d: x.permute(*d))(y, 0, 2, 1)
        return y + u * D_skip[None, None, :]

    def _B_ref(x, w1, w2, w3, w4):
        B, S, D = x.shape
        h = _gelu(_layernorm(x, axis=-1) @ w1)
        c = D // 4
        g0 = _pad(h[:, :, 0*c:1*c], ((0, 0), (1, 0), (0, 0)))[:, :S, :]
        g1 = _pad(h[:, :, 1*c:2*c], ((0, 0), (0, 1), (0, 0)))[:, 1:, :]
        g2 = _pad(h[:, :, 2*c:3*c], ((0, 0), (2, 0), (0, 0)))[:, :S, :]
        g3 = _pad(h[:, :, 3*c:   ], ((0, 0), (0, 2), (0, 0)))[:, 2:, :]
        hs = torch.concatenate([g0, g1, g2, g3], axis=-1) @ w2
        x1 = x + hs
        h2 = _gelu(_layernorm(x1, axis=-1) @ w3) @ w4
        return x1 + h2

    x = A_u
    h = x + _A_ref(_layernorm(x, axis=-1), A_log_A_real, A_A_imag, A_C_real, A_C_imag, A_log_dt, A_D_skip)
    h2 = h + _B_ref(_layernorm(h, axis=-1), B_w1, B_w2, B_w3, B_w4)
    return h2
```

```python
class Asm:
    def __init__(self):
        self.lines = []
        self.uid = 0
    def __call__(self, s):
        for l in s.split("\n"):
            self.lines.append("  " + l.strip() if l.strip() and not l.strip().endswith(":") else l.strip())
    def label(self, name): self.lines.append(name + ":")
    def newlabel(self, base="L"):
        self.uid += 1
        return f"{base}_{self.uid}"
    def c(self, s): self.lines.append("  ; " + s)
    def text(self): return "\n".join(self.lines) + "\n"

def vr(a, n=1):
    return f"v{a}" if n == 1 else f"v[{a}:{a+n-1}]"
def ar(a, n=1):
    return f"a{a}" if n == 1 else f"a[{a}:{a+n-1}]"
def sr(a, n=1):
    return f"s{a}" if n == 1 else f"s[{a}:{a+n-1}]"

def kernel_begin(A, name):
    A.lines.append(".text")
    A.lines.append(f".globl {name}")
    A.lines.append(".p2align 8")
    A.lines.append(f".type {name},@function")
    A.lines.append(f"{name}:")

def kernel_desc(name, vgpr, sgpr=96, accum=None, kernarg=120):
    if accum is None: accum = (vgpr + 3) // 4 * 4
    return f""".section .rodata,"a"
.p2align 6
.amdhsa_kernel {name}
  .amdhsa_next_free_vgpr {vgpr}
  .amdhsa_next_free_sgpr {sgpr}
  .amdhsa_accum_offset {accum}
  .amdhsa_group_segment_fixed_size 0
  .amdhsa_kernarg_size {kernarg}
  .amdhsa_user_sgpr_count 2
  .amdhsa_user_sgpr_kernarg_segment_ptr 1
  .amdhsa_system_sgpr_workgroup_id_x 1
  .amdhsa_float_denorm_mode_32 3
  .amdhsa_float_denorm_mode_16_64 3
.end_amdhsa_kernel
"""
import struct
def f2u(x): return struct.unpack("<I", struct.pack("<f", x))[0]
def fhex(x): return f"0x{f2u(x):08x}"
```

```python
from asmgen import *
import math
RS   = 4224
UT   = 0x000000
XT   = 0x210000
KR   = 0x420000
HT   = 0x630000
G1F  = 0x840000
HF   = 0xA40000
X1F  = 0xC40000
H3F  = 0xE40000
ST1  = 0x13A0000
ST0  = 0x13E0000
CS1  = 0x13E4000
CS3  = 0x13E4800
PROF = 0x1400000
WS_BYTES = 0x10000000
KA = dict(x=0, logA=8, Aim=16, Cre=24, Cim=32, logdt=40, Dskip=48, w1=64, w2=72, w3=80, w4=88, out=96, dbg=104, ws=112)
L2E = 1.4426950408889634
import numpy as np
L2E_HI = float(np.float32(L2E)); L2E_LO = L2E - L2E_HI
LN2 = math.log(2.0)
EPS = 1e-5

def srd(A, d, b, nbytes):
    A(f"s_mov_b32 s{d}, s{b}")
    A(f"s_and_b32 s{d+1}, s{b+1}, 0xffff")
    A(f"s_mov_b32 s{d+2}, 0x{nbytes:x}")
    A(f"s_mov_b32 s{d+3}, 0x20000")

def add64(A, d, b, imm):
    if isinstance(imm, int): imm = f"0x{imm:x}"
    A(f"s_add_u32 s{d}, s{b}, {imm}")
    A(f"s_addc_u32 s{d+1}, s{b+1}, 0")

def round_bf16(A, v, tmp=None):
    A(f"v_cvt_pk_bf16_f32 v{v}, v{v}, v{v}")
    A(f"v_and_b32 v{v}, 0xffff0000, v{v}")

def cmul(A, d, a, w):
    i1 = f"v_pk_mul_f32 v[{d}:{d+1}], v[{a}:{a+1}], v[{w}:{w+1}] op_sel:[0,0] op_sel_hi:[1,0]"
    i2 = f"v_pk_fma_f32 v[{d}:{d+1}], v[{a}:{a+1}], v[{w}:{w+1}], v[{d}:{d+1}] op_sel:[1,1,0] op_sel_hi:[0,1,1] neg_lo:[0,1,0]"
    return i1, i2
```

```python
from gen_common import *
GK0 = -2.0 * math.sqrt(2.0 / math.pi) * L2E
GK1 = GK0 * 0.044715

def unpack(A, d, s):
    A(f"v_lshlrev_b32 v{d}, 16, v{s}")
    A(f"v_and_b32 v{d+1}, 0xffff0000, v{s}")

def gelu_pairs(A, xs, tmp, outs, sK1, vK0):
    for x, t in zip(xs, tmp): A(f"v_pk_mul_f32 v[{t}:{t+1}], v[{x}:{x+1}], v[{x}:{x+1}]")
    for x, t in zip(xs, tmp): A(f"v_pk_fma_f32 v[{t}:{t+1}], v[{t}:{t+1}], s[{sK1}:{sK1+1}], v[{vK0}:{vK0+1}]")
    for x, t in zip(xs, tmp): A(f"v_pk_mul_f32 v[{t}:{t+1}], v[{t}:{t+1}], v[{x}:{x+1}]")
    for x, t in zip(xs, tmp):
        A(f"v_exp_f32 v{t}, v{t}"); A(f"v_exp_f32 v{t+1}, v{t+1}")
    for x, t in zip(xs, tmp): A(f"v_pk_add_f32 v[{t}:{t+1}], v[{t}:{t+1}], 1.0 op_sel_hi:[1,0]")
    for x, t in zip(xs, tmp):
        A(f"v_rcp_f32 v{t}, v{t}"); A(f"v_rcp_f32 v{t+1}, v{t+1}")
    for x, t in zip(xs, tmp): A(f"v_pk_mul_f32 v[{t}:{t+1}], v[{t}:{t+1}], v[{x}:{x+1}]")
    for t, o in zip(tmp, outs): A(f"v_cvt_pk_bf16_f32 v{o}, v{t}, v{t+1}")

def ln_scale(A, var, out):
    A(f"v_cvt_pk_bf16_f32 v{out}, v{var}, v{var}")
    A(f"v_and_b32 v{out}, 0xffff0000, v{out}")
    A(f"v_add_f32 v{out}, {fhex(EPS)}, v{out}")
    round_bf16(A, out)
    A(f"v_sqrt_f32 v{out}, v{out}")
    round_bf16(A, out)
    A(f"v_rcp_f32 v{out}, v{out}")

def half_sum(A, regs, tmps):
    for r, t in zip(regs, tmps): A(f"v_mov_b32 v{t}, v{r}")
    for r, t in zip(regs, tmps): A(f"v_permlane32_swap_b32 v{r}, v{t}")
    for r, t in zip(regs, tmps): A(f"v_add_f32 v{r}, v{r}, v{t}")

def tile64_ids(A):
    A("v_lshrrev_b32 v2, 6, v0")
    A("v_and_b32 v3, 63, v0")
    A("v_readfirstlane_b32 s4, v2")
    A("v_lshlrev_b32 v1, 4, v3")
    A("s_lshr_b32 s16, s2, 5")
    A("s_and_b32 s17, s2, 7")
    A("s_lshl_b32 s17, s17, 2")
    A("s_bfe_u32 s18, s2, 0x20003")
    A("s_add_u32 s17, s17, s18")
    A("s_and_b32 s5, s4, 1")
    A("s_lshr_b32 s6, s4, 1")

def dma_voff128(A, d0, d1, stride, t0, t1):
    A(f"v_lshrrev_b32 v{t0}, 3, v3")
    A(f"v_lshrrev_b32 v{t1}, 2, v3")
    A(f"v_and_b32 v{t1}, 4, v{t1}")
    A(f"v_xor_b32 v{t1}, v{t1}, v3")
    A(f"v_and_b32 v{t1}, 7, v{t1}")
    A(f"v_mul_u32_u24 v{d0}, {stride}, v{t0}")
    A(f"v_lshl_add_u32 v{d0}, v{t1}, 4, v{d0}")
    A(f"v_add_u32 v{d1}, {8*stride-1024}, v{d0}")

def tr_addr128(A, d, t0, t1):
    A(f"v_bfe_u32 v{t0}, v3, 2, 2")
    A(f"v_lshrrev_b32 v{t1}, 5, v3")
    A(f"v_lshl_add_u32 v{t1}, v{t1}, 2, v{t0}")
    A(f"v_lshlrev_b32 v{d}, 7, v{t1}")
    A(f"v_lshrrev_b32 v{t0}, 1, v{t0}")
    A(f"v_lshl_add_u32 v{d}, v{t0}, 6, v{d}")
    A(f"v_bfe_u32 v{t0}, v3, 4, 1")
    A(f"v_lshl_add_u32 v{d}, v{t0}, 5, v{d}")
    A(f"v_and_b32 v{t0}, 3, v3")
    A(f"v_lshl_add_u32 v{d}, v{t0}, 3, v{d}")

def exchange(A, name, ACC, exb, extra=None):
    A("s_cmp_eq_u32 s6, 0")
    A(f"s_cbranch_scc1 {name}_x0")
    A("s_nop 7"); A("s_nop 1")
    for j in range(4): A(f"ds_write_b128 v30, v[{ACC+4*j}:{ACC+4*j+3}] offset:{1024*j}")
    A("s_waitcnt lgkmcnt(0)")
    for j in range(16): A(f"v_mov_b32 v{ACC+j}, v{ACC+16+j}")
    A(f"s_branch {name}_xj")
    A.label(f"{name}_x0")
    A("s_nop 7"); A("s_nop 1")
    for j in range(4): A(f"ds_write_b128 v30, v[{ACC+16+4*j}:{ACC+16+4*j+3}] offset:{1024*j}")
    A.label(f"{name}_xj")

def ex_addrs(A, exb, stride):
    A("s_xor_b32 s19, s4, 2")
    A(f"s_mul_i32 s19, s19, {stride}")
    A(f"s_add_u32 s19, s19, {exb}")
    A("v_add_u32 v30, s19, v1")
    A(f"s_mul_i32 s19, s4, {stride}")
    A(f"s_add_u32 s19, s19, {exb}")
    A("v_add_u32 v31, s19, v1")

def gen_k2(A):
    name = "gemm1_kernel"
    LA = 4; EXB = 131072; EXS = 5120
    kernel_begin(A, name)
    A("s_cmp_ge_u32 s2, 256")
    A("s_cbranch_scc1 K2_end")
    A("s_load_dwordx2 s[12:13], s[0:1], 64")
    A("s_load_dwordx2 s[14:15], s[0:1], 112")
    tile64_ids(A)
    dma_voff128(A, 4, 5, 1024, 8, 9)
    A(f"v_mul_u32_u24 v6, {RS}, v8")
    A("v_lshl_add_u32 v6, v9, 4, v6")
    A(f"v_add_u32 v7, {8*RS-1024}, v6")
    A("s_lshl_b32 s24, s16, 7")
    A("s_lshl_b32 s19, s4, 14")
    A("s_add_u32 s24, s24, s19")
    A("s_lshl_b32 s25, s17, 7")
    A(f"s_mul_i32 s19, s4, {16*RS}")
    A("s_add_u32 s25, s25, s19")
    A(f"s_add_u32 s25, s25, 0x{HT:x}")
    A("s_lshl_b32 s26, s4, 11")
    A("s_waitcnt lgkmcnt(0)")
    srd(A, 8, 14, WS_BYTES)
    srd(A, 20, 12, 512*1024)
    def dma(c):
        A(f"s_add_u32 m0, s26, {c*16384}")
        A("buffer_load_dwordx4 v4, s[20:23], s24 offen lds")
        A("buffer_load_dwordx4 v5, s[20:23], s24 offen offset:1024 lds")
        A(f"s_add_u32 m0, s26, {c*16384+8192}")
        A("s_add_u32 s24, s24, 65536")
        A("buffer_load_dwordx4 v6, s[8:11], s25 offen lds")
        A("buffer_load_dwordx4 v7, s[8:11], s25 offen offset:1024 lds")
        A(f"s_add_u32 s25, s25, {64*RS}")
    for c in range(LA): dma(c)
    tr_addr128(A, 10, 8, 9)
    A("s_lshl_b32 s19, s6, 12")
    A("v_add_u32 v10, s19, v10")
    A("v_xor_b32 v11, 64, v10")
    A("s_lshl_b32 s19, s5, 6")
    A("v_xor_b32 v12, s19, v10")
    A("v_add_u32 v12, 8192, v12")
    A("s_lshl_b32 s19, s16, 14")
    A("v_add_u32 v13, s19, v12")
    ex_addrs(A, EXB, EXS)
    A("v_mov_b32 v14, 0x3f803f80")
    ACC = 32
    FR = [64, 88]
    def reads(c, b):
        o = (c % 4) * 16384
        for j in range(2):
            r = b + 12*j
            for (k, va) in ((8, 12), (0, 10), (4, 11)):
                A(f"ds_read_b64_tr_b16 v[{r+k}:{r+k+1}], v{va} offset:{o + j*2048}")
                A(f"ds_read_b64_tr_b16 v[{r+k+2}:{r+k+3}], v{va} offset:{o + j*2048 + 1024}")
    def compute(c, b):
        for j in range(2):
            r = b + 12*j
            first = (c == 0 and j == 0)
            for t in range(2):
                cc = "0" if first else f"v[{ACC+16*t}:{ACC+16*t+15}]"
                A(f"v_mfma_f32_32x32x16_bf16 v[{ACC+16*t}:{ACC+16*t+15}], v[{r+4*t}:{r+4*t+3}], v[{r+8}:{r+11}], {cc}")
                for i in range(2):
                    x = r + 8 + 2*t + i
                    f = first and t == 0 and i == 0
                    A(f"v_dot2_f32_bf16 v16, v{x}, v14, {'0' if f else 'v16'}")
                    A(f"v_dot2_f32_bf16 v17, v{x}, v{x}, {'0' if f else 'v17'}")
    for c in range(8):
        out = min(LA - 1, 7 - c) * 4
        extra = 4 if c > 4 else 0
        A(f"s_waitcnt vmcnt({out + extra}) lgkmcnt(0)")
        A("s_barrier")
        if c == 4:
            for r in (10, 11, 12): A(f"v_add_u32 v{r}, 65536, v{r}")
        reads(c, FR[c % 2])
        if c + LA < 8: dma(c + LA)
        if c == 4:
            A("v_lshrrev_b32 v8, 5, v3")
            A("v_lshlrev_b32 v8, 4, v8")
            A("s_lshl_b32 s19, s16, 8")
            A("s_lshl_b32 s27, s6, 7")
            A("s_add_u32 s19, s19, s27")
            A(f"s_add_u32 s19, s19, 0x{CS1:x}")
            for j in range(4): A(f"buffer_load_dwordx4 v[{112+4*j}:{115+4*j}], v8, s[8:11], s19 offen offset:{32*j}")
        if c > 0: compute(c - 1, FR[(c - 1) % 2])
    A("s_waitcnt lgkmcnt(0)")
    for j in range(2):
        A(f"ds_read_b64_tr_b16 v[{128+4*j}:{129+4*j}], v13 offset:{j*2048}")
        A(f"ds_read_b64_tr_b16 v[{130+4*j}:{131+4*j}], v13 offset:{j*2048+1024}")
    compute(7, FR[1])
    A("s_lshl_b32 s27, s16, 2")
    A("s_lshl_b32 s19, s6, 1")
    A("s_add_u32 s27, s27, s19")
    A("s_lshl_b32 s27, s27, 10")
    A("s_lshl_b32 s28, s17, 1")
    A("s_add_u32 s28, s28, s5")
    A("s_lshl_b32 s29, s28, 15")
    A("s_add_u32 s29, s29, s27")
    A(f"s_add_u32 s29, s29, 0x{HF:x}")
    A(f"s_add_u32 s27, s27, 0x{G1F:x}")
    A("s_waitcnt lgkmcnt(0)")
    A("buffer_store_dwordx4 v[128:131], v1, s[8:11], s29 offen")
    A("buffer_store_dwordx4 v[132:135], v1, s[8:11], s29 offen offset:1024")
    A("ds_write_b64 v30, v[16:17] offset:4096")
    exchange(A, "K2", ACC, EXB)
    A("s_lshr_b32 s19, s16, 2")
    A("s_add_u32 s19, s19, 1")
    A("s_sub_u32 s30, 0, s19")
    A("s_bitcmp1_b32 s16, 1")
    A("s_cselect_b32 s19, s30, s19")
    A("s_lshl_b32 s30, s28, 5")
    A("s_add_u32 s19, s19, s30")
    A("v_and_b32 v8, 31, v3")
    A("v_add_u32 v9, s19, v8")
    A("v_mov_b32 v20, 2048")
    A("v_cmp_lt_u32 vcc, v9, v20")
    A("v_bfe_u32 v20, v9, 5, 6")
    A("v_lshlrev_b32 v20, 15, v20")
    A("v_and_b32 v9, 31, v9")
    A("v_lshl_add_u32 v20, v9, 4, v20")
    A("v_lshrrev_b32 v9, 5, v3")
    A("v_lshl_add_u32 v20, v9, 9, v20")
    A("v_add_u32 v8, s30, v8")
    A("v_lshlrev_b32 v21, 3, v8")
    A(f"s_mov_b32 s32, {fhex(GK1)}"); A(f"s_mov_b32 s33, {fhex(GK1)}")
    A(f"v_mov_b32 v22, {fhex(GK0)}"); A(f"v_mov_b32 v23, {fhex(GK0)}")
    A("s_waitcnt lgkmcnt(0)")
    A("s_barrier")
    A("ds_read_b64 v[18:19], v31 offset:4096")
    for j in range(4): A(f"ds_read_b128 v[{64+4*j}:{67+4*j}], v31 offset:{1024*j}")
    A("s_waitcnt lgkmcnt(4)")
    A("v_pk_add_f32 v[16:17], v[16:17], v[18:19]")
    half_sum(A, [16, 17], [18, 19])
    A(f"v_mul_f32 v16, {fhex(1/512)}, v16")
    A(f"v_mul_f32 v17, {fhex(1/512)}, v17")
    A("v_fma_f32 v17, -v16, v16, v17")
    A("v_max_f32 v17, 0, v17")
    ln_scale(A, 17, 25)
    A("v_cvt_pk_bf16_f32 v24, v16, v16")
    A("v_and_b32 v24, 0xffff0000, v24")
    A("v_mul_f32 v17, v17, v25")
    A("v_mul_f32 v17, v17, v25")
    ln_scale(A, 17, 18)
    A("v_mul_f32 v18, v18, v25")
    A("s_waitcnt vmcnt(2) lgkmcnt(0)")
    for j in range(8): A(f"v_pk_add_f32 v[{ACC+2*j}:{ACC+2*j+1}], v[{ACC+2*j}:{ACC+2*j+1}], v[{64+2*j}:{65+2*j}]")
    for j in range(8): A(f"v_pk_fma_f32 v[{ACC+2*j}:{ACC+2*j+1}], v[{112+2*j}:{113+2*j}], v[16:17], v[{ACC+2*j}:{ACC+2*j+1}] op_sel_hi:[1,0,1] neg_lo:[0,1,0] neg_hi:[0,1,0]")
    for j in range(8): A(f"v_pk_mul_f32 v[{ACC+2*j}:{ACC+2*j+1}], v[{ACC+2*j}:{ACC+2*j+1}], v[18:19] op_sel_hi:[1,0]")
    gelu_pairs(A, [ACC+2*j for j in range(8)], [64+2*j for j in range(8)], [80+j for j in range(8)], 32, 22)
    for j in range(8): A(f"v_cndmask_b32 v{80+j}, 0, v{80+j}, vcc")
    A("buffer_store_dwordx4 v[80:83], v20, s[8:11], s27 offen")
    A("buffer_store_dwordx4 v[84:87], v20, s[8:11], s27 offen offset:1024")
    A("s_or_b32 s19, s16, s6")
    A("s_cmp_lg_u32 s19, 0")
    A("s_cbranch_scc1 K2_end")
    A(f"s_mov_b32 s19, 0x{ST0:x}")
    A("buffer_store_dwordx2 v[24:25], v21, s[8:11], s19 offen")
    A.label("K2_end")
    A("s_endpgm")
    return (name, (256,1,1), 256, EXB + 4*EXS, kernel_desc(name, 136, 40))

def gen_k35(A, which):
    is4 = which == 4
    name = "gemm4_kernel" if is4 else "gemm2_kernel"
    P = "K5" if is4 else "K3"
    KS = 86 if is4 else 32
    NCH = 22 if is4 else 8
    LA = 6 if is4 else 4
    RING = 16 if is4 else 8
    XR = 8
    EXB = RING * 8192; EXS = 4096
    XSRC = H3F if is4 else G1F
    kernel_begin(A, name)
    A("s_cmp_ge_u32 s2, 256")
    A(f"s_cbranch_scc1 {P}_end")
    A(f"s_load_dwordx2 s[12:13], s[0:1], {88 if is4 else 72}")
    A("s_load_dwordx2 s[14:15], s[0:1], 112")
    if is4: A("s_load_dwordx2 s[34:35], s[0:1], 96")
    tile64_ids(A)
    dma_voff128(A, 4, 5, 1024, 8, 9)
    A("s_lshl_b32 s24, s16, 7")
    A("s_lshl_b32 s19, s4, 14")
    A("s_add_u32 s24, s24, s19")
    A("s_lshl_b32 s28, s17, 1")
    A("s_add_u32 s28, s28, s5")
    A(f"s_mul_i32 s25, s28, {KS*1024}")
    A("s_lshl_b32 s19, s6, 11")
    A("s_add_u32 s25, s25, s19")
    A(f"s_add_u32 s25, s25, 0x{XSRC:x}")
    A("s_lshl_b32 s26, s4, 11")
    A("s_waitcnt lgkmcnt(0)")
    srd(A, 8, 14, WS_BYTES)
    srd(A, 20, 12, KS*16*1024)
    XB = 128
    def nload(c): return 3 if (is4 and c == NCH-1) else 4
    def dma(c):
        last = is4 and c == NCH - 1
        A(f"s_add_u32 m0, s26, {(c % RING)*8192}")
        xr = XB + (c % XR) * 8
        if last:
            A("s_lshl_b32 s19, s6, 10")
            A("s_sub_u32 s25, s25, s19")
        A("buffer_load_dwordx4 v4, s[20:23], s24 offen lds")
        A("buffer_load_dwordx4 v5, s[20:23], s24 offen offset:1024 lds")
        A(f"buffer_load_dwordx4 v[{xr}:{xr+3}], v1, s[8:11], s25 offen")
        if not last:
            A(f"buffer_load_dwordx4 v[{xr+4}:{xr+7}], v1, s[8:11], s25 offen offset:1024")
            A("s_add_u32 s24, s24, 65536")
            A("s_add_u32 s25, s25, 4096")
    for c in range(LA): dma(c)
    tr_addr128(A, 10, 8, 9)
    A("s_lshl_b32 s19, s6, 12")
    A("v_add_u32 v10, s19, v10")
    A("v_xor_b32 v11, 64, v10")
    if RING > 8:
        A("v_add_u32 v12, 65536, v10")
        A("v_add_u32 v13, 65536, v11")
    ex_addrs(A, EXB, EXS)
    A("s_lshl_b32 s27, s16, 2")
    A("s_lshl_b32 s19, s6, 1")
    A("s_add_u32 s27, s27, s19")
    A("s_lshl_b32 s27, s27, 10")
    A("s_lshl_b32 s29, s28, 15")
    A("s_add_u32 s27, s27, s29")
    A(f"s_add_u32 s29, s27, 0x{HF:x}")
    A(f"s_add_u32 s27, s27, 0x{X1F:x}")
    A("v_and_b32 v8, 31, v3")
    A("s_lshl_b32 s30, s28, 5")
    A("v_add_u32 v8, s30, v8")
    ACC = 32
    FR = [64, 80]
    def reads(c, b):
        last = is4 and c == NCH - 1
        s = c % RING
        o = (s % 8) * 8192
        a0, a1 = (10, 11) if s < 8 else (12, 13)
        if last:
            A("s_lshl_b32 s19, s6, 11")
            A(f"v_subrev_u32 v{a0}, s19, v{a0}")
            A(f"v_subrev_u32 v{a1}, s19, v{a1}")
        for j in range(1 if last else 2):
            r = b + 8*j
            for (k, va) in ((0, a0), (4, a1)):
                A(f"ds_read_b64_tr_b16 v[{r+k}:{r+k+1}], v{va} offset:{o + j*2048}")
                A(f"ds_read_b64_tr_b16 v[{r+k+2}:{r+k+3}], v{va} offset:{o + j*2048 + 1024}")
    def compute(c, b):
        last = is4 and c == NCH - 1
        xr = XB + (c % XR) * 8
        for j in range(1 if last else 2):
            r = b + 8*j
            first = (c == 0 and j == 0)
            for t in range(2):
                cc = "0" if first else f"v[{ACC+16*t}:{ACC+16*t+15}]"
                A(f"v_mfma_f32_32x32x16_bf16 v[{ACC+16*t}:{ACC+16*t+15}], v[{r+4*t}:{r+4*t+3}], v[{xr+4*j}:{xr+4*j+3}], {cc}")
    NE = 4 if is4 else 3
    ec = NCH - LA
    for c in range(NCH):
        out = sum(nload(x) for x in range(c+1, min(c+LA, NCH)))
        if c > ec: out += NE
        A(f"s_waitcnt vmcnt({out}) lgkmcnt(0)")
        A("s_barrier")
        reads(c, FR[c % 2])
        if c > 0: compute(c - 1, FR[(c - 1) % 2])
        if c + LA < NCH: dma(c + LA)
        if c == ec:
            A("buffer_load_dwordx4 v[96:99], v1, s[8:11], s29 offen")
            A("buffer_load_dwordx4 v[100:103], v1, s[8:11], s29 offen offset:1024")
            if is4:
                A("buffer_load_dwordx4 v[104:107], v1, s[8:11], s27 offen")
                A("buffer_load_dwordx4 v[108:111], v1, s[8:11], s27 offen offset:1024")
            else:
                A("v_lshlrev_b32 v9, 3, v8")
                A(f"s_mov_b32 s19, 0x{ST0:x}")
                A("buffer_load_dwordx2 v[24:25], v9, s[8:11], s19 offen")
    A("s_waitcnt lgkmcnt(0)")
    compute(NCH - 1, FR[(NCH - 1) % 2])
    exchange(A, P, ACC, EXB)
    A("s_waitcnt vmcnt(0)")
    if not is4:
        for j in range(8): unpack(A, 112+2*j, 96+j)
        for j in range(8): A(f"v_pk_add_f32 v[{112+2*j}:{113+2*j}], v[{112+2*j}:{113+2*j}], v[24:25] op_sel_hi:[1,0] neg_lo:[0,1] neg_hi:[0,1]")
        for j in range(8): A(f"v_cvt_pk_bf16_f32 v{96+j}, v{112+2*j}, v{113+2*j}")
        for j in range(8): unpack(A, 112+2*j, 96+j)
        for j in range(8): A(f"v_pk_mul_f32 v[{112+2*j}:{113+2*j}], v[{112+2*j}:{113+2*j}], v[24:25] op_sel:[0,1] op_sel_hi:[1,1]")
        for j in range(8): A(f"v_cvt_pk_bf16_f32 v{96+j}, v{112+2*j}, v{113+2*j}")
        for j in range(8): unpack(A, 112+2*j, 96+j)
        A("v_mov_b32 v14, 0x3f803f80")
        A("v_lshlrev_b32 v9, 7, v8")
        A("s_lshl_b32 s19, s16, 4")
        A("s_lshl_b32 s30, s6, 3")
        A("s_add_u32 s19, s19, s30")
        A(f"s_add_u32 s30, s19, 0x{ST1:x}")
    else:
        for j in range(8): unpack(A, 112+2*j, 104+j)
        for j in range(8): unpack(A, 128+2*j, 96+j)
        srd(A, 36, 34, 2048*1024)
        A("v_lshlrev_b32 v9, 10, v8")
        A("v_lshrrev_b32 v14, 5, v3")
        A("v_lshl_add_u32 v9, v14, 4, v9")
        A("s_lshl_b32 s19, s16, 7")
        A("s_lshl_b32 s30, s6, 6")
        A("s_add_u32 s30, s30, s19")
    A("s_waitcnt lgkmcnt(0)")
    A("s_barrier")
    for j in range(4): A(f"ds_read_b128 v[{64+4*j}:{67+4*j}], v31 offset:{1024*j}")
    A("s_waitcnt lgkmcnt(0)")
    for j in range(8): A(f"v_pk_add_f32 v[{ACC+2*j}:{ACC+2*j+1}], v[{ACC+2*j}:{ACC+2*j+1}], v[{64+2*j}:{65+2*j}]")
    for j in range(8): A(f"v_cvt_pk_bf16_f32 v{80+j}, v{ACC+2*j}, v{ACC+2*j+1}")
    for j in range(8): unpack(A, ACC+2*j, 80+j)
    for j in range(8): A(f"v_pk_add_f32 v[{ACC+2*j}:{ACC+2*j+1}], v[{ACC+2*j}:{ACC+2*j+1}], v[{112+2*j}:{113+2*j}]")
    for j in range(8): A(f"v_cvt_pk_bf16_f32 v{80+j}, v{ACC+2*j}, v{ACC+2*j+1}")
    if not is4:
        A("buffer_store_dwordx4 v[80:83], v1, s[8:11], s27 offen")
        A("buffer_store_dwordx4 v[84:87], v1, s[8:11], s27 offen offset:1024")
        for j in range(8):
            A(f"v_dot2_f32_bf16 v16, v{80+j}, v14, {'0' if j == 0 else 'v16'}")
            A(f"v_dot2_f32_bf16 v17, v{80+j}, v{80+j}, {'0' if j == 0 else 'v17'}")
        half_sum(A, [16, 17], [18, 19])
        A("buffer_store_dwordx2 v[16:17], v9, s[8:11], s30 offen")
    else:
        for j in range(8): unpack(A, ACC+2*j, 80+j)
        for j in range(8): A(f"v_pk_add_f32 v[{ACC+2*j}:{ACC+2*j+1}], v[{ACC+2*j}:{ACC+2*j+1}], v[{128+2*j}:{129+2*j}]")
        for j in range(8): A(f"v_cvt_pk_bf16_f32 v{80+j}, v{ACC+2*j}, v{ACC+2*j+1}")
        for q in range(2):
            A(f"v_permlane32_swap_b32 v{80+4*q}, v{82+4*q}")
            A(f"v_permlane32_swap_b32 v{81+4*q}, v{83+4*q}")
            A(f"buffer_store_dwordx4 v[{80+4*q}:{83+4*q}], v9, s[36:39], s30 offen offset:{32*q}")
    A.label(f"{P}_end")
    A("s_endpgm")
    return (name, (256,1,1), 256, EXB + 4*EXS, kernel_desc(name, 192, 44))

def gen_k4(A):
    name = "gemm3_kernel"
    LA = 4
    kernel_begin(A, name)
    A("s_cmp_ge_u32 s2, 240")
    A("s_cbranch_scc1 K4_end")
    A("s_load_dwordx2 s[12:13], s[0:1], 80")
    A("s_load_dwordx2 s[14:15], s[0:1], 112")
    A("v_lshrrev_b32 v2, 6, v0")
    A("v_and_b32 v3, 63, v0")
    A("v_readfirstlane_b32 s4, v2")
    A("v_lshlrev_b32 v1, 4, v3")
    A("s_lshr_b32 s16, s2, 4")
    A("s_and_b32 s17, s2, 7")
    A("s_lshl_b32 s17, s17, 1")
    A("s_bfe_u32 s18, s2, 0x10003")
    A("s_add_u32 s17, s17, s18")
    A("s_lshl_b32 s28, s17, 2")
    A("s_add_u32 s28, s28, s4")
    for i in range(3):
        A(f"v_add_u32 v8, {64*i}, v3")
        A("v_mul_u32_u24 v9, 0x5556, v8")
        A("v_lshrrev_b32 v9, 18, v9")
        A(f"v_mul_u32_u24 v{4+i}, {2752-192}, v9")
        A(f"v_add_u32 v{4+i}, v{4+i}, v1")
    A("s_mul_i32 s24, s16, 192")
    A(f"s_mul_i32 s19, s4, {16*2752}")
    A("s_add_u32 s24, s24, s19")
    A("s_lshl_b32 s25, s28, 15")
    A(f"s_add_u32 s25, s25, 0x{X1F:x}")
    A("s_mul_i32 s26, s4, 3072")
    A("s_waitcnt lgkmcnt(0)")
    srd(A, 8, 14, WS_BYTES)
    srd(A, 20, 12, 512*2752)
    def dma(c):
        A(f"s_add_u32 m0, s26, {c*12288}")
        A(f"buffer_load_dwordx4 a[{16*c}:{16*c+3}], v1, s[8:11], s25 offen")
        for i in range(3): A(f"buffer_load_dwordx4 v{4+i}, s[20:23], s24 offen offset:{1024*i} lds")
        for j in range(1, 4): A(f"buffer_load_dwordx4 a[{16*c+4*j}:{16*c+4*j+3}], v1, s[8:11], s25 offen offset:{1024*j}")
        A(f"s_add_u32 s24, s24, {64*2752}")
        A("s_add_u32 s25, s25, 4096")
    for c in range(LA): dma(c)
    A("v_bfe_u32 v8, v3, 2, 2")
    A("v_lshrrev_b32 v9, 5, v3")
    A("v_lshl_add_u32 v8, v9, 2, v8")
    A("v_mul_u32_u24 v10, 192, v8")
    A("v_bfe_u32 v8, v3, 4, 1")
    A("v_lshl_add_u32 v10, v8, 5, v10")
    A("v_and_b32 v8, 3, v3")
    A("v_lshl_add_u32 v10, v8, 3, v10")
    ACC = 32
    FR = [80, 92]
    def reads(ks, b):
        o = (ks % 16) * 3072
        for t in range(3):
            A(f"ds_read_b64_tr_b16 v[{b+4*t}:{b+4*t+1}], v10 offset:{o + 64*t}")
            A(f"ds_read_b64_tr_b16 v[{b+4*t+2}:{b+4*t+3}], v10 offset:{o + 64*t + 1536}")
    def compute(ks, b, w):
        for t in range(3):
            cc = "0" if ks == 0 else f"v[{ACC+16*t}:{ACC+16*t+15}]"
            A(f"s_waitcnt lgkmcnt({w + 4 - 2*t})")
            A(f"v_mfma_f32_32x32x16_bf16 v[{ACC+16*t}:{ACC+16*t+15}], v[{b+4*t}:{b+4*t+3}], a[{4*ks}:{4*ks+3}], {cc}")
    NE = 16
    for ks in range(32):
        c = ks // 4
        if ks % 4 == 0:
            out = min(LA - 1, 7 - c) * 7
            if c > 4: out += NE
            A(f"s_waitcnt vmcnt({out})")
            A("s_barrier")
            if ks == 16: A("v_add_u32 v10, 49152, v10")
        reads(ks, FR[ks % 2])
        if ks > 0: compute(ks - 1, FR[(ks - 1) % 2], 6)
        if ks % 4 == 0:
            if c + LA < 8: dma(c + LA)
            if c == 4:
                A("v_and_b32 v8, 31, v3")
                A("v_lshlrev_b32 v8, 7, v8")
                A("v_lshl_add_u32 v8, v9, 6, v8")
                A("s_lshl_b32 s19, s28, 12")
                A(f"s_add_u32 s19, s19, 0x{ST1:x}")
                for j in range(4): A(f"buffer_load_dwordx4 v[{104+4*j}:{107+4*j}], v8, s[8:11], s19 offen offset:{16*j}")
                A("v_lshlrev_b32 v8, 4, v9")
                A("s_mul_i32 s19, s16, 384")
                A(f"s_add_u32 s19, s19, 0x{CS3:x}")
                for j in range(12): A(f"buffer_load_dwordx4 v[{120+4*j}:{123+4*j}], v8, s[8:11], s19 offen offset:{32*j}")
    compute(31, FR[1], 0)
    A("s_waitcnt vmcnt(12)")
    for st in (8, 4, 2):
        for i in range(0, st, 2):
            A(f"v_pk_add_f32 v[{104+i}:{105+i}], v[{104+i}:{105+i}], v[{104+st+i}:{105+st+i}]")
    half_sum(A, [104, 105], [106, 107])
    A(f"v_mul_f32 v16, {fhex(1/512)}, v104")
    A(f"v_mul_f32 v17, {fhex(1/512)}, v105")
    A("v_fma_f32 v17, -v16, v16, v17")
    A("v_max_f32 v17, 0, v17")
    ln_scale(A, 17, 18)
    round_bf16(A, 16)
    A(f"s_mov_b32 s32, {fhex(GK1)}"); A(f"s_mov_b32 s33, {fhex(GK1)}")
    A(f"v_mov_b32 v22, {fhex(GK0)}"); A(f"v_mov_b32 v23, {fhex(GK0)}")
    A(f"s_mul_i32 s27, s28, {86*1024}")
    A(f"s_mul_i32 s19, s16, {6*1024}")
    A("s_add_u32 s27, s27, s19")
    A(f"s_add_u32 s27, s27, 0x{H3F:x}")
    A("s_waitcnt vmcnt(0)")
    for t in range(3):
        a = ACC + 16*t; cs = 120 + 16*t
        for j in range(8): A(f"v_pk_fma_f32 v[{a+2*j}:{a+2*j+1}], v[{cs+2*j}:{cs+2*j+1}], v[16:17], v[{a+2*j}:{a+2*j+1}] op_sel_hi:[1,0,1] neg_lo:[0,1,0] neg_hi:[0,1,0]")
        for j in range(8): A(f"v_pk_mul_f32 v[{a+2*j}:{a+2*j+1}], v[{a+2*j}:{a+2*j+1}], v[18:19] op_sel_hi:[1,0]")
        o = 80 + 8*t
        gelu_pairs(A, [a+2*j for j in range(8)], [cs+2*j for j in range(8)], [o+j for j in range(8)], 32, 22)
        A(f"buffer_store_dwordx4 v[{o}:{o+3}], v1, s[8:11], s27 offen")
        A(f"buffer_store_dwordx4 v[{o+4}:{o+7}], v1, s[8:11], s27 offen offset:1024")
        if t < 2: A("s_add_u32 s27, s27, 2048")
        if t == 0:
            A("s_cmp_eq_u32 s16, 14")
            A("s_cbranch_scc1 K4_end")
    A.label("K4_end")
    A("s_endpgm")
    return (name, (240,1,1), 256, 98304, kernel_desc(name, 168+128, 40, accum=168))
```

```python
from gen_common import *
TROW = 528
TCH = 60 * TROW
KDB = 2 * TCH
KDCH = 5120
K0_LDS = KDB + 2 * KDCH
assert KDB % 32 == 0

def exp_acc(A, d, x, t0, t1, sL2E, sLO, sLN2):
    A(f"v_mul_f32 v{t0}, s{sL2E}, v{x}")
    A(f"v_fma_f32 v{t1}, v{x}, s{sL2E}, -v{t0}")
    A(f"v_fma_f32 v{t1}, v{x}, s{sLO}, v{t1}")
    A(f"v_exp_f32 v{d}, v{t0}")
    A(f"v_mul_f32 v{t1}, s{sLN2}, v{t1}")
    A(f"v_fma_f32 v{d}, v{d}, v{t1}, v{d}")

def kgen_role(A):
    A("s_load_dwordx8 s[4:11], s[0:1], 8")
    A("s_load_dwordx2 s[12:13], s[0:1], 40")
    A("s_load_dwordx2 s[14:15], s[0:1], 112")
    A("s_lshl_b32 s3, s2, 9")
    A("v_lshl_add_u32 v1, v0, 1, s3")
    A("v_lshrrev_b32 v3, 7, v0")
    A("s_lshl_b32 s16, s2, 2")
    A("v_lshl_add_u32 v2, v3, 1, s16")
    A("s_waitcnt lgkmcnt(0)")
    A("global_load_ushort v4, v1, s[4:5]")
    A("global_load_ushort v8, v2, s[12:13]")
    A("global_load_ushort v5, v1, s[6:7]")
    A("global_load_ushort v6, v1, s[8:9]")
    A("global_load_ushort v7, v1, s[10:11]")
    A(f"s_mov_b32 s20, {fhex(L2E_HI)}")
    A(f"s_mov_b32 s21, {fhex(L2E_LO)}")
    A(f"s_mov_b32 s22, {fhex(LN2)}")
    A(f"s_mov_b32 s23, {TCH}")
    A(f"s_mov_b32 s24, {KDCH}")
    A(f"s_mov_b32 s25, {TROW}")
    A("v_and_b32 v9, 127, v0")
    A("v_cmp_gt_u32 vcc, 8, v9")
    A("v_lshlrev_b32 v10, 4, v9")
    A("v_sub_u32 v10, 2032, v10")
    A("v_or_b32 v11, 128, v10")
    A("v_ffbh_u32 v11, v11")
    A("v_sub_u32 v11, 25, v11")
    A("v_mov_b32 v12, -1")
    A("v_lshlrev_b32 v12, v11, v12")
    A("v_not_b32 v13, v12")
    A("v_lshrrev_b32 v13, 1, v13")
    A("v_mul_lo_u32 v14, v3, s24")
    A(f"v_add_u32 v14, {KDB}, v14")
    A("v_lshl_add_u32 v15, v10, 1, v14")
    for i in range(16):
        A(f"v_add_u32 v16, {2*i}, v15")
        A(f"v_bfe_u32 v17, v16, v11, 1")
        A(f"v_add3_u32 v16, v16, v13, v17")
        A(f"v_and_b32 v{40+i}, v16, v12")
    A("v_mul_lo_u32 v37, v3, s23")
    A("v_lshl_add_u32 v36, v9, 2, v37")
    A("v_and_b32 v16, 15, v0")
    A("v_mul_lo_u32 v17, v16, s25")
    A("v_bfe_u32 v18, v0, 4, 2")
    A("v_lshl_add_u32 v17, v18, 4, v17")
    A("v_add_u32 v38, v17, v37")
    A("v_bfe_u32 v19, v0, 6, 1")
    A(f"v_mul_u32_u24 v20, {16*TROW}, v19")
    A("v_add_u32 v39, v38, v20")
    A("v_lshl_add_u32 v16, v19, 4, v16")
    A("v_lshl_add_u32 v16, v16, 4, v14")
    A("v_and_b32 v20, 1, v18")
    A("v_lshrrev_b32 v21, 1, v18")
    A("v_lshl_add_u32 v56, v20, 1, v16")
    A("v_lshl_add_u32 v56, v21, 9, v56")
    A("v_lshl_add_u32 v57, v20, 3, v16")
    A("v_lshl_add_u32 v57, v21, 11, v57")
    A(f"s_mov_b32 s26, {RS}")
    A("v_lshrrev_b32 v16, 1, v2")
    A("v_mul_lo_u32 v16, v16, s26")
    A(f"v_add_u32 v16, 0x{KR:x}, v16")
    A("v_lshl_add_u32 v58, v9, 5, v16")
    A("v_lshl_add_u32 v59, v9, 4, v16")
    A("v_add_u32 v59, 4096, v59")
    A("s_waitcnt vmcnt(3)")
    A("v_lshlrev_b32 v4, 16, v4")
    A("v_lshlrev_b32 v8, 16, v8")
    exp_acc(A, 10, 4, 16, 17, 20, 21, 22)
    exp_acc(A, 11, 8, 18, 19, 20, 21, 22)
    A("v_cvt_pk_bf16_f32 v10, v10, v11")
    A("v_and_b32 v11, 0xffff0000, v10")
    A("v_lshlrev_b32 v10, 16, v10")
    A("s_waitcnt vmcnt(0)")
    A("v_lshlrev_b32 v5, 16, v5")
    A("v_lshlrev_b32 v6, 16, v6")
    A("v_lshlrev_b32 v7, 16, v7")
    A("v_mul_f32 v10, v10, v11")
    A("v_mul_f32 v5, v5, v11")
    A("v_add_f32 v11, v11, v11")
    A(f"v_mul_f32 v10, {fhex(-L2E)}, v10")
    A("v_mul_f32 v5, 0.15915494, v5")
    A("v_mul_f32 v20, v6, v11")
    A("v_mul_f32 v21, v7, v11")
    for (d, p) in ((14, 8.0), (12, 1.0), (16, 256.0)):
        A(f"v_mul_f32 v18, {fhex(p)}, v10")
        A(f"v_mul_f32 v19, {fhex(p)}, v5")
        A("v_exp_f32 v18, v18")
        A("v_fract_f32 v19, v19")
        A(f"v_cos_f32 v{d}, v19")
        A(f"v_sin_f32 v{d+1}, v19")
        A(f"v_mul_f32 v{d}, v{d}, v18")
        A(f"v_mul_f32 v{d+1}, v{d+1}, v18")
    def xrow(p):
        for rt, g, f in ((0, (0,2,4,6), (0,1,256)), (1, (0,256,512,768), (512,516,1536))):
            for q, ff in enumerate(f):
                for reg, gg in enumerate(g):
                    if ff + gg == p: return 16*rt + 4*q + reg
        raise KeyError(p)
    tmp = [60, 61, 62, 63]; tcount = [0]
    def emit_store(reg, row, neg):
        t = tmp[tcount[0] % 4]; tcount[0] += 1
        return (f"v_cvt_pk_bf16_f32 v{t}, v{reg}, {'-' if neg else ''}v{reg+1}", f"ds_write_b32 v36, v{t} offset:{row*TROW}")
    seq = []
    for p in range(1, 8): seq.append((20+2*p, 20+2*(p-1), 12, xrow(p), True))
    seq.append((22, 20, 16, xrow(256), True)); seq.append((26, 24, 16, xrow(258), True))
    seq.append((30, 28, 16, xrow(260), True)); seq.append((34, 32, 16, xrow(262), True))
    seq.append((20, 22, 16, xrow(512), True)); seq.append((28, 30, 16, xrow(516), True))
    seq.append((22, 20, 16, xrow(768), True)); seq.append((30, 28, 16, xrow(772), True))
    seq.append((20, 22, 16, xrow(1024), True)); seq.append((22, 20, 16, xrow(1280), True))
    seq.append((20, 22, 16, xrow(1536), True)); seq.append((22, 20, 16, xrow(1792), True))
    seq.append((20, 22, 16, xrow(2048), True))
    eseq = []
    prev = 14
    for j in range(2, 32):
        d = 4 if j % 2 == 0 else 6
        eseq.append((d, prev, 14, 28 + j, False)); prev = d
    for s in emit_store(20, xrow(0), True): A(s)
    A("v_mov_b32 v18, 0x3f80")
    A(f"ds_write_b32 v36, v18 offset:{28*TROW}")
    for s in emit_store(14, 29, False): A(s)
    items = []
    i = j = 0
    while i < len(seq) or j < len(eseq):
        pair = []
        if j < len(eseq): pair.append(eseq[j]); j += 1
        if i < len(seq): pair.append(seq[i]); i += 1
        cm = [cmul(A, d, a, w) for (d, a, w, r, n) in pair]
        for c in cm: A(c[0])
        for c in cm: A(c[1])
        st = [emit_store(d, r, n) for (d, a, w, r, n) in pair]
        for s in st: A(s[0])
        for s in st: A(s[1])
    A("s_waitcnt lgkmcnt(0)")
    A("s_barrier")
    for s in range(8):
        A(f"ds_read_b128 v[{4+4*s}:{7+4*s}], v39 offset:{28*TROW + 64*s}")
        A(f"ds_read_b128 v[{64+4*s}:{67+4*s}], v38 offset:{64*s}")
        A(f"ds_read_b128 v[{96+4*s}:{99+4*s}], v38 offset:{16*TROW + 64*s}")
        if s == 3: pass
    for s in range(8):
        A(f"s_waitcnt lgkmcnt({min(15, 3*(7-s))})")
        c0 = "0" if s == 0 else "v[60:63]"
        c1 = "0" if s == 0 else "v[128:131]"
        A(f"v_mfma_f32_16x16x32_bf16 v[60:63], v[{64+4*s}:{67+4*s}], v[{4+4*s}:{7+4*s}], {c0}")
        A(f"v_mfma_f32_16x16x32_bf16 v[128:131], v[{96+4*s}:{99+4*s}], v[{4+4*s}:{7+4*s}], {c1}")
    A("v_cvt_pk_bf16_f32 v60, v60, v61")
    A("v_cvt_pk_bf16_f32 v62, v62, v63")
    A("ds_write_b16 v56, v60 offset:0")
    A("ds_write_b16_d16_hi v56, v60 offset:4")
    A("ds_write_b16 v56, v62 offset:8")
    A("ds_write_b16_d16_hi v56, v62 offset:12")
    A("v_cvt_pk_bf16_f32 v128, v128, v129")
    A("v_cvt_pk_bf16_f32 v130, v130, v131")
    A("ds_write_b16 v57, v128 offset:1024")
    A("ds_write_b16_d16_hi v57, v128 offset:1536")
    A("ds_write_b16 v57, v130 offset:2048")
    A("ds_write_b16_d16_hi v57, v130 offset:2560")
    A("v_mov_b32 v64, 0"); A("v_mov_b32 v65, 0"); A("v_mov_b32 v66, 0"); A("v_mov_b32 v67, 0")
    A("s_waitcnt lgkmcnt(0)")
    A("s_barrier")
    for j in range(8):
        A(f"ds_read_u16 v{4+j}, v{40+15-2*j}")
        A(f"ds_read_u16 v{12+j}, v{40+14-2*j}")
    A("s_waitcnt lgkmcnt(8)")
    for j in range(4): A(f"v_lshl_or_b32 v{20+j}, v{12+j}, 16, v{4+j}")
    A("global_store_dwordx4 v58, v[20:23], s[14:15]")
    A("s_waitcnt lgkmcnt(0)")
    for j in range(4, 8): A(f"v_lshl_or_b32 v{20+j}, v{12+j}, 16, v{4+j}")
    A("global_store_dwordx4 v58, v[24:27], s[14:15] offset:16")
    A("s_and_saveexec_b64 s[28:29], vcc")
    A("s_cbranch_execz K0_end")
    A("global_store_dwordx4 v59, v[64:67], s[14:15]")
    A("s_branch K0_end")

def wave_sum(A, regs):
    for mod in ("row_shr:1", "row_shr:2", "row_shr:4", "row_shr:8"):
        for r in regs: A(f"v_add_f32_dpp v{r}, v{r}, v{r} {mod} row_mask:0xf bank_mask:0xf bound_ctrl:0")
    for r in regs: A(f"v_add_f32_dpp v{r}, v{r}, v{r} row_bcast:15 row_mask:0xa bank_mask:0xf")
    for r in regs: A(f"v_add_f32_dpp v{r}, v{r}, v{r} row_bcast:31 row_mask:0xc bank_mask:0xf")

def ln_role(A):
    A("s_load_dwordx2 s[4:5], s[0:1], 0")
    A("s_load_dwordx2 s[14:15], s[0:1], 112")
    A("s_and_b32 s6, s2, 7")
    A("s_lshl_b32 s6, s6, 5")
    A("s_bfe_u32 s7, s2, 0x50003")
    A("s_add_u32 s6, s6, s7")
    A("s_lshl_b32 s7, s6, 13")
    A("v_lshrrev_b32 v2, 6, v0")
    A("v_and_b32 v3, 63, v0")
    A("v_lshl_add_u32 v1, v2, 11, s7")
    A("v_lshl_add_u32 v1, v3, 4, v1")
    A("s_waitcnt lgkmcnt(0)")
    A("global_load_dwordx4 v[4:7], v1, s[4:5]")
    A("global_load_dwordx4 v[8:11], v1, s[4:5] offset:1024")
    A("v_lshlrev_b32 v40, 11, v2")
    A("v_lshl_add_u32 v40, v3, 5, v40")
    A("v_lshlrev_b32 v41, 2, v0")
    A(f"s_mov_b32 s8, {RS}")
    A("v_mul_lo_u32 v42, v0, s8")
    A("s_and_b32 s9, s6, 3")
    A("s_lshl_b32 s9, s9, 10")
    A("s_lshr_b32 s10, s6, 2")
    A("s_lshl_b32 s10, s10, 4")
    A("s_add_u32 s9, s9, s10")
    A("v_add_u32 v42, s9, v42")
    A(f"v_add_u32 v43, {256*RS}, v42")
    add64(A, 16, 14, XT)
    A("s_mov_b32 s20, 0x05040100")
    A("s_mov_b32 s21, 0x07060302")
    A("v_mov_b32 v44, 0x3f803f80")
    A("s_waitcnt vmcnt(0)")
    for i in range(4):
        c = lambda r: "0" if i == 0 else f"v{r}"
        A(f"v_dot2_f32_bf16 v12, v{4+i}, v44, {c(12)}")
        A(f"v_dot2_f32_bf16 v13, v{4+i}, v{4+i}, {c(13)}")
        A(f"v_dot2_f32_bf16 v14, v{8+i}, v44, {c(14)}")
        A(f"v_dot2_f32_bf16 v15, v{8+i}, v{8+i}, {c(15)}")
    for i in range(4):
        A(f"v_perm_b32 v{48+2*i}, v{8+i}, v{4+i}, s20")
        A(f"v_perm_b32 v{49+2*i}, v{8+i}, v{4+i}, s21")
    A("ds_write_b128 v40, v[48:51] offset:8192")
    A("ds_write_b128 v40, v[52:55] offset:8208")
    wave_sum(A, [12, 13, 14, 15])
    A(f"v_mul_f32 v16, {fhex(1/512)}, v12")
    A(f"v_mul_f32 v17, {fhex(1/512)}, v14")
    A(f"v_mul_f32 v13, {fhex(1/512)}, v13")
    A(f"v_mul_f32 v15, {fhex(1/512)}, v15")
    A("v_fma_f32 v13, -v16, v16, v13")
    A("v_fma_f32 v15, -v17, v17, v15")
    A("v_max_f32 v13, 0, v13")
    A("v_max_f32 v15, 0, v15")
    A("v_cvt_pk_bf16_f32 v16, v16, v17")
    A("v_cvt_pk_bf16_f32 v13, v13, v15")
    A("v_and_b32 v15, 0xffff0000, v13")
    A("v_lshlrev_b32 v13, 16, v13")
    A(f"v_add_f32 v13, {fhex(EPS)}, v13")
    A(f"v_add_f32 v15, {fhex(EPS)}, v15")
    A("v_cvt_pk_bf16_f32 v13, v13, v15")
    A("v_and_b32 v15, 0xffff0000, v13")
    A("v_lshlrev_b32 v13, 16, v13")
    A("v_sqrt_f32 v13, v13")
    A("v_sqrt_f32 v15, v15")
    A("v_cvt_pk_bf16_f32 v13, v13, v15")
    A("v_and_b32 v15, 0xffff0000, v13")
    A("v_lshlrev_b32 v13, 16, v13")
    A("v_rcp_f32 v13, v13")
    A("v_rcp_f32 v15, v15")
    A("v_and_b32 v17, 0xffff0000, v16")
    A("v_lshlrev_b32 v16, 16, v16")
    A("v_readlane_b32 s24, v16, 63")
    A("v_readlane_b32 s25, v17, 63")
    A("v_readlane_b32 s26, v13, 63")
    A("v_readlane_b32 s27, v15, 63")
    for i in range(8):
        A(f"v_lshlrev_b32 v{20+2*i}, 16, v{48+i}")
        A(f"v_and_b32 v{21+2*i}, 0xffff0000, v{48+i}")
    for i in range(8):
        A(f"v_pk_add_f32 v[{20+2*i}:{21+2*i}], v[{20+2*i}:{21+2*i}], s[24:25] neg_lo:[0,1] neg_hi:[0,1]")
    for i in range(8):
        A(f"v_cvt_pk_bf16_f32 v{56+i}, v{20+2*i}, v{21+2*i}")
    for i in range(8):
        A(f"v_lshlrev_b32 v{20+2*i}, 16, v{56+i}")
        A(f"v_and_b32 v{21+2*i}, 0xffff0000, v{56+i}")
    for i in range(8):
        A(f"v_pk_mul_f32 v[{20+2*i}:{21+2*i}], v[{20+2*i}:{21+2*i}], s[26:27]")
    for i in range(8):
        A(f"v_cvt_pk_bf16_f32 v{56+i}, v{20+2*i}, v{21+2*i}")
    A("ds_write_b128 v40, v[56:59]")
    A("ds_write_b128 v40, v[60:63] offset:16")
    A("s_waitcnt lgkmcnt(0)")
    A("s_barrier")
    k = 0
    for a in range(2):
        for hh in range(2):
            o = a*32 + hh*4
            r = 4 + 4*k
            A(f"ds_read2st64_b32 v[{r}:{r+1}], v41 offset0:{o} offset1:{o+8}")
            A(f"ds_read2st64_b32 v[{r+2}:{r+3}], v41 offset0:{o+16} offset1:{o+24}")
            k += 1
    A("s_waitcnt lgkmcnt(6)")
    A("global_store_dwordx4 v42, v[4:7], s[14:15]")
    A("s_waitcnt lgkmcnt(4)")
    A("global_store_dwordx4 v43, v[8:11], s[14:15]")
    A("s_waitcnt lgkmcnt(2)")
    A("global_store_dwordx4 v42, v[12:15], s[16:17]")
    A("s_waitcnt lgkmcnt(0)")
    A("global_store_dwordx4 v43, v[16:19], s[16:17]")

def gen_k0(A):
    kernel_begin(A, "prep_kernel")
    A("s_cmp_ge_u32 s2, 256")
    A("s_cbranch_scc1 K0_ln")
    kgen_role(A)
    A.label("K0_ln")
    A("s_cmp_ge_u32 s2, 512")
    A("s_cbranch_scc1 K0_end")
    ln_role(A)
    A.label("K0_end")
    A("s_endpgm")
    return ("prep_kernel", (512,1,1), 256, K0_LDS, kernel_desc("prep_kernel", 132, 40))
```

```python
from gen_common import *
CPS = 4160
KCH = 8 * CPS
UB = 2 * KCH
UPL = 1536
UCH = 4 * UPL
EXB = UB + 2 * UCH
K1_LDS = EXB
NCS = 30

def conv_role(A):
    A("s_load_dwordx2 s[14:15], s[0:1], 112")
    A("s_load_dwordx2 s[12:13], s[0:1], 48")
    A("v_lshrrev_b32 v2, 6, v0")
    A("v_and_b32 v3, 63, v0")
    A("v_readfirstlane_b32 s4, v2")
    A("v_lshlrev_b32 v1, 4, v3")
    A("s_mov_b32 s5, s2")
    A("s_lshr_b32 s6, s4, 1")
    A("s_and_b32 s7, s4, 1")
    A("s_lshl_b32 s5, s5, 1")
    A("s_add_u32 s5, s5, s6")
    A(f"s_mul_i32 s16, s5, {RS}")
    A(f"s_mul_i32 s17, s6, {KCH}")
    A(f"s_mul_i32 s18, s7, {4*CPS}")
    A("s_add_u32 s18, s18, s17")
    A("s_lshl_b32 s19, s7, 3")
    A("s_add_u32 s19, s19, s16")
    A(f"s_add_u32 s19, s19, 0x{KR:x}")
    A(f"s_mul_i32 s20, s6, {UCH}")
    A(f"s_add_u32 s20, s20, {UB}")
    A(f"s_mul_i32 s21, s7, {2*UPL}")
    A("s_add_u32 s21, s21, s20")
    A("s_add_u32 s21, s21, 512")
    A("s_lshl_b32 s22, s7, 11")
    A("s_add_u32 s22, s22, s16")
    A("s_waitcnt lgkmcnt(0)")
    srd(A, 8, 14, WS_BYTES)
    A("s_mov_b32 m0, s21")
    A("buffer_load_dwordx4 v1, s[8:11], s22 offen lds")
    A(f"s_add_u32 m0, s21, {UPL-1024}")
    A("buffer_load_dwordx4 v1, s[8:11], s22 offen offset:1024 lds")
    for half in range(2):
        for c in range(4):
            A(f"s_add_u32 m0, s18, {c*CPS}")
            A(f"s_add_u32 s23, s19, {2*c}")
            A(f"buffer_load_dwordx4 v1, s[8:11], s23 offen offset:{half*1024} lds")
            A(f"buffer_load_dwordx4 v1, s[8:11], s23 offen offset:{half*1024+2048} lds")
    A("v_and_b32 v4, 31, v3")
    A("v_lshrrev_b32 v5, 5, v3")
    A("v_lshlrev_b32 v6, 4, v4")
    A("v_lshl_add_u32 v6, v5, 3, v6")
    A("s_lshl_b32 s24, s7, 9")
    A("s_add_u32 s25, s24, s16")
    A(f"s_add_u32 s25, s25, 0x{XT:x}")
    for g in range(4):
        A(f"buffer_load_dwordx2 v[{100+2*g}:{101+2*g}], v6, s[8:11], s25 offen offset:{g*1024}")
    A("s_lshl_b32 s26, s5, 1")
    A("v_mov_b32 v7, s26")
    A("global_load_ushort v108, v7, s[12:13]")
    A("v_mov_b32 v8, 0"); A("v_mov_b32 v9, 0"); A("v_mov_b32 v10, 0"); A("v_mov_b32 v11, 0")
    A("v_bfe_u32 v12, v3, 2, 2")
    A(f"v_mul_u32_u24 v12, {CPS}, v12")
    A("v_and_b32 v13, 3, v3")
    A("v_lshl_add_u32 v12, v13, 4, v12")
    A("v_add_u32 v12, s18, v12")
    A("ds_write_b128 v12, v[8:11] offset:4096")
    A(f"v_mul_u32_u24 v12, {UPL}, v5")
    A("v_lshl_add_u32 v12, v4, 4, v12")
    A("s_sub_u32 s27, s21, 512")
    A("v_add_u32 v12, s27, v12")
    A("ds_write_b128 v12, v[8:11]")
    A("v_sub_u32 v12, 31, v4")
    A("v_and_b32 v13, 7, v12")
    A(f"v_mul_u32_u24 v13, {CPS}, v13")
    A("v_lshrrev_b32 v12, 3, v12")
    A("v_add_u32 v12, v12, v5")
    A("v_lshl_add_u32 v13, v12, 4, v13")
    A("s_lshl_b32 s27, s7, 5")
    A("s_add_u32 s27, s27, s17")
    A("v_add_u32 v20, s27, v13")
    A(f"v_mul_u32_u24 v13, {UPL}, v5")
    A("v_lshl_add_u32 v13, v4, 4, v13")
    A("s_sub_u32 s27, s21, 512")
    A("v_add_u32 v21, s27, v13")
    A("s_add_u32 s27, s20, s24")
    A("v_add_u32 v22, s27, v6")
    A("s_xor_b32 s27, s4, 1")
    A("s_lshl_b32 s27, s27, 12")
    A("v_add_u32 v23, s27, v1")
    A("s_lshl_b32 s27, s4, 12")
    A("v_add_u32 v24, s27, v1")
    A("v_lshlrev_b32 v25, 6, v4")
    A("v_lshl_add_u32 v25, v5, 3, v25")
    A("s_lshl_b32 s28, s7, 11")
    A("s_add_u32 s28, s28, s16")
    A(f"s_add_u32 s28, s28, 0x{HT:x}")
    A("s_waitcnt vmcnt(13) lgkmcnt(0)")
    A("s_barrier")
    ACC0, ACC1 = 32, 48
    bufs = [64, 80]
    def reads(m, b):
        A(f"ds_read_b128 v[{b}:{b+3}], v20 offset:{(63-m)*64}")
        A(f"ds_read_b128 v[{b+8}:{b+11}], v21 offset:{(32-m)*16}")
        A(f"ds_read_b128 v[{b+12}:{b+15}], v21 offset:{(64-m)*16}")
        A(f"ds_read_b128 v[{b+4}:{b+7}], v20 offset:{(31-m)*64}")
    reads(31, bufs[0])
    for it, m in enumerate(range(31, -1, -1)):
        b = bufs[it % 2]; nb = bufs[(it+1) % 2]
        if m == 17:
            A("s_waitcnt vmcnt(5)")
            A("s_barrier")
        if m > 0:
            reads(m-1, nb)
            w = 4
        else: w = 0
        c0 = "0" if it == 0 else f"v[{ACC0}:{ACC0+15}]"
        c1 = "0" if it == 0 else f"v[{ACC1}:{ACC1+15}]"
        A(f"s_waitcnt lgkmcnt({w+2})")
        A(f"v_mfma_f32_32x32x16_bf16 v[{ACC0}:{ACC0+15}], v[{b}:{b+3}], v[{b+8}:{b+11}], {c0}")
        A(f"s_waitcnt lgkmcnt({w+1})")
        A(f"v_mfma_f32_32x32x16_bf16 v[{ACC1}:{ACC1+15}], v[{b}:{b+3}], v[{b+12}:{b+15}], {c1}")
        A(f"s_waitcnt lgkmcnt({w})")
        A(f"v_mfma_f32_32x32x16_bf16 v[{ACC1}:{ACC1+15}], v[{b+4}:{b+7}], v[{b+8}:{b+11}], v[{ACC1}:{ACC1+15}]")
    for g in range(4):
        A(f"ds_read_b64 v[{110+2*g}:{111+2*g}], v22 offset:{512+g*UPL}")
    A("s_barrier")
    A("s_cmp_eq_u32 s7, 0")
    A("s_cbranch_scc1 K1_s0")
    A("s_nop 7")
    for j in range(4): A(f"ds_write_b128 v23, v[{ACC0+4*j}:{ACC0+4*j+3}] offset:{1024*j}")
    A("s_waitcnt lgkmcnt(0)")
    for j in range(16): A(f"v_mov_b32 v{ACC0+j}, v{ACC1+j}")
    A("s_branch K1_join")
    A.label("K1_s0")
    A("s_nop 7")
    for j in range(4): A(f"ds_write_b128 v23, v[{ACC1+4*j}:{ACC1+4*j+3}] offset:{1024*j}")
    A.label("K1_join")
    A("s_waitcnt vmcnt(0) lgkmcnt(0)")
    A("s_barrier")
    for j in range(4): A(f"ds_read_b128 v[{64+4*j}:{67+4*j}], v24 offset:{1024*j}")
    A("v_lshlrev_b32 v108, 16, v108")
    A("v_mov_b32 v109, v108")
    for j in range(8):
        A(f"v_lshlrev_b32 v{80+2*j}, 16, v{110+j}")
        A(f"v_and_b32 v{81+2*j}, 0xffff0000, v{110+j}")
    for j in range(8): A(f"v_pk_mul_f32 v[{80+2*j}:{81+2*j}], v[{80+2*j}:{81+2*j}], v[108:109]")
    for j in range(8): A(f"v_cvt_pk_bf16_f32 v{110+j}, v{80+2*j}, v{81+2*j}")
    for j in range(8):
        A(f"v_lshlrev_b32 v{80+2*j}, 16, v{110+j}")
        A(f"v_and_b32 v{81+2*j}, 0xffff0000, v{110+j}")
    for j in range(8):
        A(f"v_lshlrev_b32 v{48+2*j}, 16, v{100+j}")
        A(f"v_and_b32 v{49+2*j}, 0xffff0000, v{100+j}")
    A("s_waitcnt lgkmcnt(0)")
    for j in range(8): A(f"v_pk_add_f32 v[{32+2*j}:{33+2*j}], v[{32+2*j}:{33+2*j}], v[{64+2*j}:{65+2*j}]")
    def rnd():
        for j in range(8): A(f"v_cvt_pk_bf16_f32 v{110+j}, v{32+2*j}, v{33+2*j}")
        for j in range(8):
            A(f"v_lshlrev_b32 v{32+2*j}, 16, v{110+j}")
            A(f"v_and_b32 v{33+2*j}, 0xffff0000, v{110+j}")
    rnd()
    for j in range(8): A(f"v_pk_add_f32 v[{32+2*j}:{33+2*j}], v[{32+2*j}:{33+2*j}], v[{80+2*j}:{81+2*j}]")
    rnd()
    for j in range(8): A(f"v_pk_add_f32 v[{32+2*j}:{33+2*j}], v[{32+2*j}:{33+2*j}], v[{48+2*j}:{49+2*j}]")
    for g in range(4):
        A(f"v_cvt_pk_bf16_f32 v{110+2*g}, v{32+4*g}, v{33+4*g}")
        A(f"v_cvt_pk_bf16_f32 v{111+2*g}, v{34+4*g}, v{35+4*g}")
        A(f"buffer_store_dwordx2 v[{110+2*g}:{111+2*g}], v25, s[8:11], s28 offen offset:{16*g}")
    A("s_endpgm")

def colsum_role(A):
    A("s_sub_u32 s3, s2, 256")
    A("s_load_dwordx2 s[4:5], s[0:1], 64")
    A("s_load_dwordx2 s[6:7], s[0:1], 80")
    A("s_load_dwordx2 s[14:15], s[0:1], 112")
    A("s_cmp_lt_u32 s3, 8")
    A("s_movk_i32 s16, 2752")
    A("s_cselect_b32 s16, 1024, s16")
    A("s_cselect_b32 s18, 0, 8")
    A("s_sub_u32 s18, s3, s18")
    A("s_lshl_b32 s17, s16, 9")
    A("s_lshl_b32 s19, s3, 8")
    A("s_waitcnt lgkmcnt(0)")
    A("s_cmp_lt_u32 s3, 8")
    A("s_cselect_b32 s8, s4, s6")
    A("s_cselect_b32 s9, s5, s7")
    A("s_and_b32 s9, s9, 0xffff")
    A("s_mov_b32 s10, s17")
    A("s_mov_b32 s11, 0x20000")
    A("v_lshrrev_b32 v1, 3, v0")
    A("v_and_b32 v2, 7, v0")
    A("v_mul_lo_u32 v3, v1, s16")
    A("v_lshl_add_u32 v3, v2, 4, v3")
    A("s_lshl_b32 s20, s18, 7")
    A("s_lshl_b32 s21, s16, 5")
    for i in range(16):
        A(f"buffer_load_dwordx4 v[{16+4*i}:{19+4*i}], v3, s[8:11], s20 offen")
        A("s_add_u32 s20, s20, s21")
    for j in range(8): A(f"v_mov_b32 v{4+j}, 0")
    for i in range(16):
        A(f"s_waitcnt vmcnt({15-i})")
        for j in range(4):
            A(f"v_lshlrev_b32 v12, 16, v{16+4*i+j}")
            A(f"v_and_b32 v13, 0xffff0000, v{16+4*i+j}")
            A(f"v_pk_add_f32 v[{4+2*j}:{5+2*j}], v[{4+2*j}:{5+2*j}], v[12:13]")
    A("v_lshlrev_b32 v12, 5, v0")
    A("ds_write_b128 v12, v[4:7]")
    A("ds_write_b128 v12, v[8:11] offset:16")
    A("s_waitcnt lgkmcnt(0)")
    A("s_barrier")
    A("v_cmp_gt_u32 vcc, 64, v0")
    A("s_and_saveexec_b64 s[22:23], vcc")
    A("s_cbranch_execz K1_end")
    A("v_lshlrev_b32 v12, 2, v0")
    for i in range(16):
        A(f"ds_read2st64_b32 v[{16+2*i}:{17+2*i}], v12 offset0:{2*i} offset1:{2*i+1}")
    A("s_waitcnt lgkmcnt(0)")
    for st in (16, 8, 4, 2):
        for i in range(0, st, 2):
            A(f"v_pk_add_f32 v[{16+i}:{17+i}], v[{16+i}:{17+i}], v[{16+st+i}:{17+st+i}]")
    A("v_add_f32 v16, v16, v17")
    A(f"s_add_u32 s19, s19, 0x{CS1:x}")
    A("v_add_u32 v12, s19, v12")
    A("global_store_dword v12, v16, s[14:15]")

def gen_k1(A):
    kernel_begin(A, "conv_kernel")
    A("s_cmp_ge_u32 s2, 256")
    A("s_cbranch_scc1 K1_cs")
    conv_role(A)
    A.label("K1_cs")
    A(f"s_cmp_ge_u32 s2, {256+NCS}")
    A("s_cbranch_scc1 K1_end")
    colsum_role(A)
    A.label("K1_end")
    A("s_endpgm")
    return ("conv_kernel", (256+NCS,1,1), 256, K1_LDS, kernel_desc("conv_kernel", 120, 40))
```

```python
import re
TRANS = ("v_exp_f32","v_log_f32","v_rcp_f32","v_rsq_f32","v_sqrt_f32","v_sin_f32","v_cos_f32","v_rcp_iflag_f32")
def regs_of(tok):
    tok = tok.strip()
    tok = re.sub(r"^-", "", tok)
    m = re.match(r"^abs\((.*)\)$", tok) or re.match(r"^\|(.*)\|$", tok)
    if m: tok = m.group(1)
    m = re.match(r"^([vas])(\d+)$", tok)
    if m: return {(m.group(1), int(m.group(2)))}
    m = re.match(r"^([vas])\[(\d+):(\d+)\]$", tok)
    if m: return {(m.group(1), i) for i in range(int(m.group(2)), int(m.group(3))+1)}
    if tok == "vcc": return {("s", 106), ("s", 107)}
    if tok == "vcc_lo": return {("s", 106)}
    if tok == "vcc_hi": return {("s", 107)}
    if tok == "exec": return {("s", 126), ("s", 127)}
    if tok == "m0": return {("s", 124)}
    return set()
def split_ops(s):
    out = []; depth = 0; cur = ""
    for ch in s:
        if ch in "[(": depth += 1
        if ch in "])": depth -= 1
        if ch == "," and depth == 0: out.append(cur.strip()); cur = ""
        else: cur += ch
    if cur.strip(): out.append(cur.strip())
    return out
class I:
    def __init__(self, line):
        self.line = line
        s = line.split(";")[0].strip()
        self.mn = s.split()[0] if s else ""
        rest = s[len(self.mn):].strip()
        ops = split_ops(rest)
        self.mods = ""
        if ops:
            parts = ops[-1].split(None, 1)
            ops[-1] = parts[0]
            if len(parts) > 1: self.mods = parts[1]
        self.ops = ops
        mn = self.mn
        self.base = re.sub(r"_(e32|e64|dpp|sdwa)$", "", mn)
        self.is_mfma = mn.startswith("v_mfma")
        self.is_valu = mn.startswith("v_") and not self.is_mfma
        self.is_trans = self.base in TRANS
        self.is_dot = mn.startswith("v_dot")
        self.is_dpp = mn.endswith("_dpp") or "row_" in self.mods or "quad_perm" in self.mods
        self.is_ds = mn.startswith("ds_")
        self.is_vmem = mn.startswith("buffer_") or mn.startswith("global_") or mn.startswith("flat_")
        self.is_salu = mn.startswith("s_")
        self.is_perml = mn.startswith("v_permlane")
        self.is_lane = self.base in ("v_readlane_b32","v_readfirstlane_b32","v_writelane_b32")
        self.ws = 1
        if mn == "s_nop": self.ws = int(ops[0], 0) + 1
        R = [regs_of(o) for o in ops]
        self.W = set(); self.Rd = set(); self.srcC = set(); self.srcAB = set(); self.sdata = set()
        self.lds_dma = self.is_vmem and (" lds" in " " + self.mods or "_lds_" in mn)
        if self.is_mfma:
            self.W = R[0]; self.srcAB = R[1] | R[2]; self.srcC = R[3]; self.Rd = self.srcAB | self.srcC
            self.passes = 8 if "32x32x16" in mn else 4 if "16x16x32" in mn else None
            assert self.passes, mn
        elif self.is_valu:
            if self.base in ("v_swap_b32",) or self.is_perml:
                self.W = R[0] | R[1]; self.Rd = R[0] | R[1]
            elif self.base.startswith("v_cmp"):
                self.W = R[0]; self.Rd = set().union(*R[1:])
                if self.base.startswith("v_cmpx"): self.W |= regs_of("exec")
            elif re.match(r"v_(add|sub|subrev|addc|subb)_co_", self.base) or self.base in ("v_mad_u64_u32","v_div_scale_f32"):
                self.W = R[0] | R[1]; self.Rd = set().union(*R[2:])
            else:
                self.W = R[0]; self.Rd = set().union(*R[1:]) if len(R) > 1 else set()
                if self.base in ("v_fmac_f32","v_dot2c_f32_bf16","v_writelane_b32") or self.is_dpp or "UNUSED_PRESERVE" in self.mods: self.Rd |= R[0]
        elif self.is_ds:
            if "read" in mn or "permute" in mn or "swizzle" in mn:
                self.W = R[0]; self.Rd = set().union(*R[1:])
            else:
                self.Rd = set().union(*R)
        elif self.is_vmem:
            if self.lds_dma: self.Rd = set().union(*R) | regs_of("m0")
            elif "load" in mn: self.W = R[0]; self.Rd = set().union(*R[1:])
            elif mn.startswith("buffer_wb") or mn.startswith("buffer_inv"): pass
            else:
                self.Rd = set().union(*R)
                if "x4" in mn or "x3" in mn:
                    self.sdata = R[0] if mn.startswith("buffer_") else R[1]
                if "atomic" in mn and "sc0" in self.mods: self.W = R[0]
        elif self.is_salu:
            nodef = ("s_cmp","s_cbranch","s_branch","s_waitcnt","s_nop","s_barrier","s_endpgm","s_sleep","s_setprio","s_bitcmp")
            if not mn.startswith(nodef) and R:
                self.W = R[0]; self.Rd = set().union(*R[1:]) if len(R) > 1 else set()
                if "saveexec" in mn: self.W |= regs_of("exec")
            else:
                self.Rd = set().union(*R) if R else set()
def V(s): return {r for r in s if r[0] in "va"}
def S(s): return {r for r in s if r[0] == "s"}
def need(p, c):
    n = 0
    if p.is_valu:
        wv = V(p.W); wsg = S(p.W)
        if c.is_dpp and c.is_valu and wv & c.Rd: n = max(n, 2)
        if c.is_perml and wv & c.Rd: n = max(n, 2)
        if c.is_lane and wv & c.Rd: n = max(n, 1)
        if c.is_mfma and wv & c.Rd: n = max(n, 2)
        if p.is_trans and c.is_valu and not c.is_trans and wv & c.Rd: n = max(n, 1)
        if p.is_trans and (c.is_mfma) and wv & c.Rd: n = max(n, 2)
        if p.is_dot and (c.is_valu or c.is_mfma or c.is_ds or c.is_vmem) and wv & (c.Rd | c.W):
            same = c.base == p.base and not (wv & (c.Rd - c.W))
            if c.base == p.base:
                ab = set().union(*[regs_of(o) for o in c.ops[1:3]])
                if wv & ab: n = max(n, 3)
            else: n = max(n, 3)
        if ("op_sel" in p.mods and not p.mn.startswith("v_pk")) or "dst_sel:WORD" in p.mods or "dst_sel:BYTE" in p.mods:
            if c.is_valu and wv & (c.Rd | c.W): n = max(n, 1)
        if wsg:
            if c.is_vmem and wsg & c.Rd: n = max(n, 5)
            if c.is_valu and wsg & c.Rd: n = max(n, 4 if c.is_lane else 2)
            ex = regs_of("exec")
            if wsg & ex:
                if c.is_dpp: n = max(n, 5)
                if c.is_lane or c.is_perml or c.is_mfma: n = max(n, 4)
    if p.is_salu and (("s",124) in p.W) and c.lds_dma: n = max(n, 1)
    if p.is_vmem and p.sdata and (p.sdata & c.W): n = max(n, 2)
    if p.is_mfma:
        P = p.passes
        if c.is_mfma:
            if p.W & c.srcC:
                if p.W == c.srcC and c.passes == P: pass
                else: n = max(n, P + 2)
            if p.W & c.srcAB: n = max(n, P + 4)
            if (p.W & c.W) and not (p.W & c.srcC): n = max(n, P + 2)
        else:
            if p.W & (c.Rd | c.W): n = max(n, P + 4)
            if c.is_valu and (p.srcC & c.W): n = max(n, P - 1)
    return n
def is_insn(l):
    s = l.split(";")[0].strip()
    return bool(s) and not s.endswith(":") and not s.startswith(".")
def fix(lines, verbose=False):
    out = []; hist = []
    ins = 0
    for l in lines:
        if not is_insn(l):
            out.append(l)
            if l.strip().startswith(".p2align") or l.strip().startswith(".text"): hist = []
            continue
        c = I(l)
        d = 0; req = 0
        for p in reversed(hist[-24:]):
            n = need(p, c)
            if n - d > req: req = n - d
            d += p.ws
            if d >= 20: break
        while req > 0:
            k = min(req, 16)
            nl = f"  s_nop {k-1}"
            out.append(nl); hist.append(I(nl)); req -= k; ins += 1
        out.append(l); hist.append(c)
        if c.mn in ("s_endpgm", "s_branch"): hist = []
    labels = {}
    for i, l in enumerate(out):
        s = l.strip()
        if s.endswith(":") and not s.startswith(";"): labels[s[:-1]] = i
    for i, l in enumerate(out):
        if not is_insn(l): continue
        c = I(l)
        if c.mn.startswith("s_cbranch") or c.mn == "s_branch":
            t = labels[c.ops[0]]
            pre = [I(x) for x in out[max(0,i-40):i+1] if is_insn(x)]
            post = [I(x) for x in out[t:t+40] if is_insn(x)]
            for j, cc in enumerate(post):
                d = sum(x.ws for x in post[:j])
                if d >= 20: break
                dd = d
                for p in reversed(pre):
                    if need(p, cc) > dd:
                        raise RuntimeError(f"hazard across branch {l!r}: {p.line!r} -> {cc.line!r} needs {need(p,cc)} has {dd}")
                    dd += p.ws
                    if dd >= 20: break
    return out
```

```python
import sys
from gen_common import *
from gen_k0 import gen_k0
from gen_k1 import gen_k1
from gen_gemm import gen_k2, gen_k35, gen_k4
import hazard
HDR = open("sequential_preLN__ssm_conv_s4d__mixer_s_mlp__prompt.s.ref").read().split("; Override launch")[0]
def build(extra_empty=0):
    A = Asm()
    ks = [gen_k0(A), gen_k1(A), gen_k2(A), gen_k35(A, 2), gen_k4(A), gen_k35(A, 4)]
    launches = list(ks)
    if extra_empty:
        kernel_begin(A, "empty_kernel"); A("s_endpgm")
        e = ("empty_kernel", (256,1,1), 256, 0, kernel_desc("empty_kernel", 8, 16))
        ks.append(e); launches += [e]*extra_empty
    body = hazard.fix(A.lines)
    txt = HDR
    for (n, g, b, lds, d) in launches:
        txt += f"; @launch kernel={n} grid=({g[0]},{g[1]},{g[2]}) block=({b},1,1) lds={lds}\n"
    txt += '.amdgcn_target "amdgcn-amd-amdhsa--gfx950"\n' + "\n".join(body) + "\n" + "".join(k[4] for k in ks)
    return txt
if __name__ == "__main__":
    out = sys.argv[1] if len(sys.argv) > 1 else "sequential_preLN__ssm_conv_s4d__mixer_s_mlp__prompt.s"
    extra = int(sys.argv[2]) if len(sys.argv) > 2 else 0
    Asm.prof = len(sys.argv) > 3 and sys.argv[3] in ("prof", "dbg")
    Asm.dbgprof = len(sys.argv) > 3 and sys.argv[3] == "dbg"
    open(out, "w").write(build(extra))
```

```python
class Asm:
    def __init__(self):
        self.lines = []
        self.uid = 0
    def __call__(self, s):
        for l in s.split("\n"):
            self.lines.append("  " + l.strip() if l.strip() and not l.strip().endswith(":") else l.strip())
    def label(self, name): self.lines.append(name + ":")
    def newlabel(self, base="L"):
        self.uid += 1
        return f"{base}_{self.uid}"
    def c(self, s): self.lines.append("  ; " + s)
    prof = False
    kidx = -1
    dbgprof = False
    def stamp(self, i):
        if self.prof: self(f"s_memtime s[{64+2*i}:{65+2*i}]")
    def endpgm(self):
        if self.prof:
            lab = self.newlabel("Lprof")
            self("s_waitcnt vmcnt(0)")
            self.stamp(13)
            self("s_memrealtime s[62:63]")
            self("s_load_dwordx2 s[94:95], s[0:1], 112")
            self("s_mov_b64 exec, 1")
            self("s_cmp_lg_u32 s59, 0")
            self(f"s_cbranch_scc1 {lab}")
            self("s_waitcnt lgkmcnt(0)")
            self("v_mov_b32 v4, s60"); self("v_mov_b32 v5, s62")
            for i in range(14):
                self(f"s_sub_u32 s{64+2*i}, s{64+2*i}, s92")
                self(f"v_mov_b32 v{6+i}, s{64+2*i}")
            self(f"s_lshl_b32 s58, s2, 6")
            self(f"s_add_u32 s58, s58, {0x1400000 + self.kidx*65536}")
            self("v_mov_b32 v1, s58")
            for j in range(4): self(f"global_store_dwordx4 v1, v[{4+4*j}:{7+4*j}], s[94:95] offset:{16*j}")
            if self.dbgprof:
                self("s_load_dwordx2 s[96:97], s[0:1], 104")
                self("s_waitcnt lgkmcnt(0)")
                self(f"s_add_u32 s96, s96, {512*(5-self.kidx)}")
                self("s_addc_u32 s97, s97, 0")
                self("v_not_b32 v4, v4")
                self(f"v_mov_b32 v1, {8*self.kidx}")
                self("global_atomic_umax v1, v4, s[96:97]")
                self("global_atomic_umax v1, v5, s[96:97] offset:4")
            self.label(lab)
        self("s_endpgm")
    def text(self): return "\n".join(self.lines) + "\n"

def vr(a, n=1):
    return f"v{a}" if n == 1 else f"v[{a}:{a+n-1}]"
def ar(a, n=1):
    return f"a{a}" if n == 1 else f"a[{a}:{a+n-1}]"
def sr(a, n=1):
    return f"s{a}" if n == 1 else f"s[{a}:{a+n-1}]"

def kernel_begin(A, name):
    A.lines.append(".text")
    A.lines.append(f".globl {name}")
    A.lines.append(".p2align 8")
    A.lines.append(f".type {name},@function")
    A.lines.append(f"{name}:")
    A.kidx += 1
    if A.prof:
        A("s_memrealtime s[60:61]")
        A("s_memtime s[92:93]")
        A("v_lshrrev_b32 v2, 6, v0")
        A("s_nop 0")
        A("v_readfirstlane_b32 s59, v2")
        for i in range(14): A(f"s_mov_b32 s{64+2*i}, 0")

PROF_ON = False
def kernel_desc(name, vgpr, sgpr=96, accum=None, kernarg=120):
    if Asm.prof: sgpr = 100
    if accum is None: accum = (vgpr + 3) // 4 * 4
    return f""".section .rodata,"a"
.p2align 6
.amdhsa_kernel {name}
  .amdhsa_next_free_vgpr {vgpr}
  .amdhsa_next_free_sgpr {sgpr}
  .amdhsa_accum_offset {accum}
  .amdhsa_group_segment_fixed_size 0
  .amdhsa_kernarg_size {kernarg}
  .amdhsa_user_sgpr_count 2
  .amdhsa_user_sgpr_kernarg_segment_ptr 1
  .amdhsa_system_sgpr_workgroup_id_x 1
  .amdhsa_float_denorm_mode_32 3
  .amdhsa_float_denorm_mode_16_64 3
.end_amdhsa_kernel
"""
import struct
def f2u(x): return struct.unpack("<I", struct.pack("<f", x))[0]
def fhex(x): return f"0x{f2u(x):08x}"
```

```python
from gen_common import *
GK0 = -2.0 * math.sqrt(2.0 / math.pi) * L2E
GK1 = GK0 * 0.044715

def unpack(A, d, s):
    A(f"v_lshlrev_b32 v{d}, 16, v{s}")
    A(f"v_and_b32 v{d+1}, 0xffff0000, v{s}")

def gelu_pairs(A, xs, tmp, outs, sK1, vK0):
    for x, t in zip(xs, tmp): A(f"v_pk_mul_f32 v[{t}:{t+1}], v[{x}:{x+1}], v[{x}:{x+1}]")
    for x, t in zip(xs, tmp): A(f"v_pk_fma_f32 v[{t}:{t+1}], v[{t}:{t+1}], s[{sK1}:{sK1+1}], v[{vK0}:{vK0+1}]")
    for x, t in zip(xs, tmp): A(f"v_pk_mul_f32 v[{t}:{t+1}], v[{t}:{t+1}], v[{x}:{x+1}]")
    for x, t in zip(xs, tmp):
        A(f"v_exp_f32 v{t}, v{t}"); A(f"v_exp_f32 v{t+1}, v{t+1}")
    for x, t in zip(xs, tmp): A(f"v_pk_add_f32 v[{t}:{t+1}], v[{t}:{t+1}], 1.0 op_sel_hi:[1,0]")
    for x, t in zip(xs, tmp):
        A(f"v_rcp_f32 v{t}, v{t}"); A(f"v_rcp_f32 v{t+1}, v{t+1}")
    for x, t in zip(xs, tmp): A(f"v_pk_mul_f32 v[{t}:{t+1}], v[{t}:{t+1}], v[{x}:{x+1}]")
    for t, o in zip(tmp, outs): A(f"v_cvt_pk_bf16_f32 v{o}, v{t}, v{t+1}")

def ln_scale(A, var, out):
    A(f"v_cvt_pk_bf16_f32 v{out}, v{var}, v{var}")
    A(f"v_and_b32 v{out}, 0xffff0000, v{out}")
    A(f"v_add_f32 v{out}, {fhex(EPS)}, v{out}")
    round_bf16(A, out)
    A(f"v_sqrt_f32 v{out}, v{out}")
    round_bf16(A, out)
    A(f"v_rcp_f32 v{out}, v{out}")

def half_sum(A, regs, tmps):
    for r, t in zip(regs, tmps): A(f"v_mov_b32 v{t}, v{r}")
    for r, t in zip(regs, tmps): A(f"v_permlane32_swap_b32 v{r}, v{t}")
    for r, t in zip(regs, tmps): A(f"v_add_f32 v{r}, v{r}, v{t}")

def tile64_ids(A):
    A("v_lshrrev_b32 v2, 6, v0")
    A("v_and_b32 v3, 63, v0")
    A("v_readfirstlane_b32 s4, v2")
    A("v_lshlrev_b32 v1, 4, v3")
    A("s_lshr_b32 s16, s2, 5")
    A("s_and_b32 s17, s2, 7")
    A("s_lshl_b32 s17, s17, 2")
    A("s_bfe_u32 s18, s2, 0x20003")
    A("s_add_u32 s17, s17, s18")
    A("s_and_b32 s5, s4, 1")
    A("s_lshr_b32 s6, s4, 1")

def dma_voff128(A, d0, d1, stride, t0, t1):
    A(f"v_lshrrev_b32 v{t0}, 3, v3")
    A(f"v_lshrrev_b32 v{t1}, 2, v3")
    A(f"v_and_b32 v{t1}, 4, v{t1}")
    A(f"v_xor_b32 v{t1}, v{t1}, v3")
    A(f"v_and_b32 v{t1}, 7, v{t1}")
    A(f"v_mul_u32_u24 v{d0}, {stride}, v{t0}")
    A(f"v_lshl_add_u32 v{d0}, v{t1}, 4, v{d0}")
    A(f"v_add_u32 v{d1}, {8*stride-1024}, v{d0}")

def tr_addr128(A, d, t0, t1):
    A(f"v_bfe_u32 v{t0}, v3, 2, 2")
    A(f"v_lshrrev_b32 v{t1}, 5, v3")
    A(f"v_lshl_add_u32 v{t1}, v{t1}, 2, v{t0}")
    A(f"v_lshlrev_b32 v{d}, 7, v{t1}")
    A(f"v_lshrrev_b32 v{t0}, 1, v{t0}")
    A(f"v_lshl_add_u32 v{d}, v{t0}, 6, v{d}")
    A(f"v_bfe_u32 v{t0}, v3, 4, 1")
    A(f"v_lshl_add_u32 v{d}, v{t0}, 5, v{d}")
    A(f"v_and_b32 v{t0}, 3, v3")
    A(f"v_lshl_add_u32 v{d}, v{t0}, 3, v{d}")

def exchange(A, name, ACC, exb, extra=None):
    A.stamp(10)
    A("s_cmp_eq_u32 s6, 0")
    A(f"s_cbranch_scc1 {name}_x0")
    A("s_nop 7"); A("s_nop 1")
    for j in range(4): A(f"ds_write_b128 v30, v[{ACC+4*j}:{ACC+4*j+3}] offset:{1024*j}")
    A("s_waitcnt lgkmcnt(0)")
    for j in range(16): A(f"v_mov_b32 v{ACC+j}, v{ACC+16+j}")
    A(f"s_branch {name}_xj")
    A.label(f"{name}_x0")
    A("s_nop 7"); A("s_nop 1")
    for j in range(4): A(f"ds_write_b128 v30, v[{ACC+16+4*j}:{ACC+16+4*j+3}] offset:{1024*j}")
    A.label(f"{name}_xj")

def ex_addrs(A, exb, stride):
    A("s_xor_b32 s19, s4, 2")
    A(f"s_mul_i32 s19, s19, {stride}")
    A(f"s_add_u32 s19, s19, {exb}")
    A("v_add_u32 v30, s19, v1")
    A(f"s_mul_i32 s19, s4, {stride}")
    A(f"s_add_u32 s19, s19, {exb}")
    A("v_add_u32 v31, s19, v1")

def gen_k2(A):
    name = "gemm1_kernel"
    LA = 4; EXB = 131072; EXS = 5120
    kernel_begin(A, name)
    A("s_cmp_ge_u32 s2, 256")
    A("s_cbranch_scc1 K2_end")
    A("s_load_dwordx2 s[12:13], s[0:1], 64")
    A("s_load_dwordx2 s[14:15], s[0:1], 112")
    tile64_ids(A)
    dma_voff128(A, 4, 5, 1024, 8, 9)
    A(f"v_mul_u32_u24 v6, {RS}, v8")
    A("v_lshl_add_u32 v6, v9, 4, v6")
    A(f"v_add_u32 v7, {8*RS-1024}, v6")
    A("s_lshl_b32 s24, s16, 7")
    A("s_lshl_b32 s19, s4, 14")
    A("s_add_u32 s24, s24, s19")
    A("s_lshl_b32 s25, s17, 7")
    A(f"s_mul_i32 s19, s4, {16*RS}")
    A("s_add_u32 s25, s25, s19")
    A(f"s_add_u32 s25, s25, 0x{HT:x}")
    A("s_lshl_b32 s26, s4, 11")
    A("s_waitcnt lgkmcnt(0)")
    A.stamp(0)
    srd(A, 8, 14, WS_BYTES)
    srd(A, 20, 12, 512*1024)
    def dma(c):
        A(f"s_add_u32 m0, s26, {c*16384}")
        A("buffer_load_dwordx4 v4, s[20:23], s24 offen lds")
        A("buffer_load_dwordx4 v5, s[20:23], s24 offen offset:1024 lds")
        A(f"s_add_u32 m0, s26, {c*16384+8192}")
        A("s_add_u32 s24, s24, 65536")
        A("buffer_load_dwordx4 v6, s[8:11], s25 offen lds")
        A("buffer_load_dwordx4 v7, s[8:11], s25 offen offset:1024 lds")
        A(f"s_add_u32 s25, s25, {64*RS}")
    for c in range(LA): dma(c)
    A.stamp(1)
    tr_addr128(A, 10, 8, 9)
    A("s_lshl_b32 s19, s6, 12")
    A("v_add_u32 v10, s19, v10")
    A("v_xor_b32 v11, 64, v10")
    A("s_lshl_b32 s19, s5, 6")
    A("v_xor_b32 v12, s19, v10")
    A("v_add_u32 v12, 8192, v12")
    A("s_lshl_b32 s19, s16, 14")
    A("v_add_u32 v13, s19, v12")
    ex_addrs(A, EXB, EXS)
    A("v_mov_b32 v14, 0x3f803f80")
    ACC = 32
    FR = [64, 88]
    def reads(c, b):
        o = (c % 4) * 16384
        for j in range(2):
            r = b + 12*j
            for (k, va) in ((8, 12), (0, 10), (4, 11)):
                A(f"ds_read_b64_tr_b16 v[{r+k}:{r+k+1}], v{va} offset:{o + j*2048}")
                A(f"ds_read_b64_tr_b16 v[{r+k+2}:{r+k+3}], v{va} offset:{o + j*2048 + 1024}")
    def compute(c, b):
        for j in range(2):
            r = b + 12*j
            first = (c == 0 and j == 0)
            for t in range(2):
                cc = "0" if first else f"v[{ACC+16*t}:{ACC+16*t+15}]"
                A(f"v_mfma_f32_32x32x16_bf16 v[{ACC+16*t}:{ACC+16*t+15}], v[{r+4*t}:{r+4*t+3}], v[{r+8}:{r+11}], {cc}")
                for i in range(2):
                    x = r + 8 + 2*t + i
                    f = first and t == 0 and i == 0
                    A(f"v_dot2_f32_bf16 v16, v{x}, v14, {'0' if f else 'v16'}")
                    A(f"v_dot2_f32_bf16 v17, v{x}, v{x}, {'0' if f else 'v17'}")
    for c in range(8):
        out = min(LA - 1, 7 - c) * 4
        extra = 4 if c > 4 else 0
        A(f"s_waitcnt vmcnt({out + extra}) lgkmcnt(0)")
        A("s_barrier")
        A.stamp(2 + c)
        if c == 4:
            for r in (10, 11, 12): A(f"v_add_u32 v{r}, 65536, v{r}")
        reads(c, FR[c % 2])
        if c + LA < 8: dma(c + LA)
        if c == 4:
            A("v_lshrrev_b32 v8, 5, v3")
            A("v_lshlrev_b32 v8, 4, v8")
            A("s_lshl_b32 s19, s16, 8")
            A("s_lshl_b32 s27, s6, 7")
            A("s_add_u32 s19, s19, s27")
            A(f"s_add_u32 s19, s19, 0x{CS1:x}")
            for j in range(4): A(f"buffer_load_dwordx4 v[{112+4*j}:{115+4*j}], v8, s[8:11], s19 offen offset:{32*j}")
        if c > 0: compute(c - 1, FR[(c - 1) % 2])
    A("s_waitcnt lgkmcnt(0)")
    for j in range(2):
        A(f"ds_read_b64_tr_b16 v[{128+4*j}:{129+4*j}], v13 offset:{j*2048}")
        A(f"ds_read_b64_tr_b16 v[{130+4*j}:{131+4*j}], v13 offset:{j*2048+1024}")
    compute(7, FR[1])
    A("s_lshl_b32 s27, s16, 2")
    A("s_lshl_b32 s19, s6, 1")
    A("s_add_u32 s27, s27, s19")
    A("s_lshl_b32 s27, s27, 10")
    A("s_lshl_b32 s28, s17, 1")
    A("s_add_u32 s28, s28, s5")
    A("s_lshl_b32 s29, s28, 15")
    A("s_add_u32 s29, s29, s27")
    A(f"s_add_u32 s29, s29, 0x{HF:x}")
    A(f"s_add_u32 s27, s27, 0x{G1F:x}")
    A("s_waitcnt lgkmcnt(0)")
    A("buffer_store_dwordx4 v[128:131], v1, s[8:11], s29 offen")
    A("buffer_store_dwordx4 v[132:135], v1, s[8:11], s29 offen offset:1024")
    A("ds_write_b64 v30, v[16:17] offset:4096")
    exchange(A, "K2", ACC, EXB)
    A("s_lshr_b32 s19, s16, 2")
    A("s_add_u32 s19, s19, 1")
    A("s_sub_u32 s30, 0, s19")
    A("s_bitcmp1_b32 s16, 1")
    A("s_cselect_b32 s19, s30, s19")
    A("s_lshl_b32 s30, s28, 5")
    A("s_add_u32 s19, s19, s30")
    A("v_and_b32 v8, 31, v3")
    A("v_add_u32 v9, s19, v8")
    A("v_mov_b32 v20, 2048")
    A("v_cmp_lt_u32 vcc, v9, v20")
    A("v_bfe_u32 v20, v9, 5, 6")
    A("v_lshlrev_b32 v20, 15, v20")
    A("v_and_b32 v9, 31, v9")
    A("v_lshl_add_u32 v20, v9, 4, v20")
    A("v_lshrrev_b32 v9, 5, v3")
    A("v_lshl_add_u32 v20, v9, 9, v20")
    A("v_add_u32 v8, s30, v8")
    A("v_lshlrev_b32 v21, 3, v8")
    A(f"s_mov_b32 s32, {fhex(GK1)}"); A(f"s_mov_b32 s33, {fhex(GK1)}")
    A(f"v_mov_b32 v22, {fhex(GK0)}"); A(f"v_mov_b32 v23, {fhex(GK0)}")
    A("s_waitcnt lgkmcnt(0)")
    A("s_barrier")
    A.stamp(11)
    A("ds_read_b64 v[18:19], v31 offset:4096")
    for j in range(4): A(f"ds_read_b128 v[{64+4*j}:{67+4*j}], v31 offset:{1024*j}")
    A("s_waitcnt lgkmcnt(4)")
    A("v_pk_add_f32 v[16:17], v[16:17], v[18:19]")
    half_sum(A, [16, 17], [18, 19])
    A(f"v_mul_f32 v16, {fhex(1/512)}, v16")
    A(f"v_mul_f32 v17, {fhex(1/512)}, v17")
    A("v_fma_f32 v17, -v16, v16, v17")
    A("v_max_f32 v17, 0, v17")
    ln_scale(A, 17, 25)
    A("v_cvt_pk_bf16_f32 v24, v16, v16")
    A("v_and_b32 v24, 0xffff0000, v24")
    A("v_mul_f32 v17, v17, v25")
    A("v_mul_f32 v17, v17, v25")
    ln_scale(A, 17, 18)
    A("v_mul_f32 v18, v18, v25")
    A("s_waitcnt vmcnt(2) lgkmcnt(0)")
    for j in range(8): A(f"v_pk_add_f32 v[{ACC+2*j}:{ACC+2*j+1}], v[{ACC+2*j}:{ACC+2*j+1}], v[{64+2*j}:{65+2*j}]")
    for j in range(8): A(f"v_pk_fma_f32 v[{ACC+2*j}:{ACC+2*j+1}], v[{112+2*j}:{113+2*j}], v[16:17], v[{ACC+2*j}:{ACC+2*j+1}] op_sel_hi:[1,0,1] neg_lo:[0,1,0] neg_hi:[0,1,0]")
    for j in range(8): A(f"v_pk_mul_f32 v[{ACC+2*j}:{ACC+2*j+1}], v[{ACC+2*j}:{ACC+2*j+1}], v[18:19] op_sel_hi:[1,0]")
    gelu_pairs(A, [ACC+2*j for j in range(8)], [64+2*j for j in range(8)], [80+j for j in range(8)], 32, 22)
    for j in range(8): A(f"v_cndmask_b32 v{80+j}, 0, v{80+j}, vcc")
    A("buffer_store_dwordx4 v[80:83], v20, s[8:11], s27 offen")
    A("buffer_store_dwordx4 v[84:87], v20, s[8:11], s27 offen offset:1024")
    A("s_or_b32 s19, s16, s6")
    A("s_cmp_lg_u32 s19, 0")
    A("s_cbranch_scc1 K2_end")
    A(f"s_mov_b32 s19, 0x{ST0:x}")
    A("buffer_store_dwordx2 v[24:25], v21, s[8:11], s19 offen")
    A.label("K2_end")
    A.stamp(12)
    A.endpgm()
    return (name, (256,1,1), 256, EXB + 4*EXS, kernel_desc(name, 136, 40))

def gen_k35(A, which):
    is4 = which == 4
    name = "gemm4_kernel" if is4 else "gemm2_kernel"
    P = "K5" if is4 else "K3"
    KS = 86 if is4 else 32
    NCH = 22 if is4 else 8
    LA = 6 if is4 else 4
    RING = 16 if is4 else 8
    XR = 8
    EXB = RING * 8192; EXS = 4096
    XSRC = H3F if is4 else G1F
    kernel_begin(A, name)
    A("s_cmp_ge_u32 s2, 256")
    A(f"s_cbranch_scc1 {P}_end")
    A(f"s_load_dwordx2 s[12:13], s[0:1], {88 if is4 else 72}")
    A("s_load_dwordx2 s[14:15], s[0:1], 112")
    if is4: A("s_load_dwordx2 s[34:35], s[0:1], 96")
    tile64_ids(A)
    dma_voff128(A, 4, 5, 1024, 8, 9)
    A("s_lshl_b32 s24, s16, 7")
    A("s_lshl_b32 s19, s4, 14")
    A("s_add_u32 s24, s24, s19")
    A("s_lshl_b32 s28, s17, 1")
    A("s_add_u32 s28, s28, s5")
    A(f"s_mul_i32 s25, s28, {KS*1024}")
    A("s_lshl_b32 s19, s6, 11")
    A("s_add_u32 s25, s25, s19")
    A(f"s_add_u32 s25, s25, 0x{XSRC:x}")
    A("s_lshl_b32 s26, s4, 11")
    A("s_waitcnt lgkmcnt(0)")
    A.stamp(0)
    srd(A, 8, 14, WS_BYTES)
    srd(A, 20, 12, KS*16*1024)
    XB = 128
    def nload(c): return 3 if (is4 and c == NCH-1) else 4
    def dma(c):
        last = is4 and c == NCH - 1
        A(f"s_add_u32 m0, s26, {(c % RING)*8192}")
        xr = XB + (c % XR) * 8
        if last:
            A("s_lshl_b32 s19, s6, 10")
            A("s_sub_u32 s25, s25, s19")
        A("buffer_load_dwordx4 v4, s[20:23], s24 offen lds")
        A("buffer_load_dwordx4 v5, s[20:23], s24 offen offset:1024 lds")
        A(f"buffer_load_dwordx4 v[{xr}:{xr+3}], v1, s[8:11], s25 offen")
        if not last:
            A(f"buffer_load_dwordx4 v[{xr+4}:{xr+7}], v1, s[8:11], s25 offen offset:1024")
            A("s_add_u32 s24, s24, 65536")
            A("s_add_u32 s25, s25, 4096")
    for c in range(LA): dma(c)
    A.stamp(1)
    tr_addr128(A, 10, 8, 9)
    A("s_lshl_b32 s19, s6, 12")
    A("v_add_u32 v10, s19, v10")
    A("v_xor_b32 v11, 64, v10")
    if RING > 8:
        A("v_add_u32 v12, 65536, v10")
        A("v_add_u32 v13, 65536, v11")
    ex_addrs(A, EXB, EXS)
    A("s_lshl_b32 s27, s16, 2")
    A("s_lshl_b32 s19, s6, 1")
    A("s_add_u32 s27, s27, s19")
    A("s_lshl_b32 s27, s27, 10")
    A("s_lshl_b32 s29, s28, 15")
    A("s_add_u32 s27, s27, s29")
    A(f"s_add_u32 s29, s27, 0x{HF:x}")
    A(f"s_add_u32 s27, s27, 0x{X1F:x}")
    A("v_and_b32 v8, 31, v3")
    A("s_lshl_b32 s30, s28, 5")
    A("v_add_u32 v8, s30, v8")
    ACC = 32
    FR = [64, 80]
    def reads(c, b):
        last = is4 and c == NCH - 1
        s = c % RING
        o = (s % 8) * 8192
        a0, a1 = (10, 11) if s < 8 else (12, 13)
        if last:
            A("s_lshl_b32 s19, s6, 11")
            A(f"v_subrev_u32 v{a0}, s19, v{a0}")
            A(f"v_subrev_u32 v{a1}, s19, v{a1}")
        for j in range(1 if last else 2):
            r = b + 8*j
            for (k, va) in ((0, a0), (4, a1)):
                A(f"ds_read_b64_tr_b16 v[{r+k}:{r+k+1}], v{va} offset:{o + j*2048}")
                A(f"ds_read_b64_tr_b16 v[{r+k+2}:{r+k+3}], v{va} offset:{o + j*2048 + 1024}")
    def compute(c, b):
        last = is4 and c == NCH - 1
        xr = XB + (c % XR) * 8
        for j in range(1 if last else 2):
            r = b + 8*j
            first = (c == 0 and j == 0)
            for t in range(2):
                cc = "0" if first else f"v[{ACC+16*t}:{ACC+16*t+15}]"
                A(f"v_mfma_f32_32x32x16_bf16 v[{ACC+16*t}:{ACC+16*t+15}], v[{r+4*t}:{r+4*t+3}], v[{xr+4*j}:{xr+4*j+3}], {cc}")
    NE = 4 if is4 else 3
    ec = NCH - LA
    for c in range(NCH):
        out = sum(nload(x) for x in range(c+1, min(c+LA, NCH)))
        if c > ec: out += NE
        A(f"s_waitcnt vmcnt({out}) lgkmcnt(0)")
        A("s_barrier")
        if not is4: A.stamp(2 + c)
        elif c % 3 == 0: A.stamp(2 + c // 3)
        reads(c, FR[c % 2])
        if c > 0: compute(c - 1, FR[(c - 1) % 2])
        if c + LA < NCH: dma(c + LA)
        if c == ec:
            A("buffer_load_dwordx4 v[96:99], v1, s[8:11], s29 offen")
            A("buffer_load_dwordx4 v[100:103], v1, s[8:11], s29 offen offset:1024")
            if is4:
                A("buffer_load_dwordx4 v[104:107], v1, s[8:11], s27 offen")
                A("buffer_load_dwordx4 v[108:111], v1, s[8:11], s27 offen offset:1024")
            else:
                A("v_lshlrev_b32 v9, 3, v8")
                A(f"s_mov_b32 s19, 0x{ST0:x}")
                A("buffer_load_dwordx2 v[24:25], v9, s[8:11], s19 offen")
    A("s_waitcnt lgkmcnt(0)")
    compute(NCH - 1, FR[(NCH - 1) % 2])
    exchange(A, P, ACC, EXB)
    A("s_waitcnt vmcnt(0)")
    if not is4:
        for j in range(8): unpack(A, 112+2*j, 96+j)
        for j in range(8): A(f"v_pk_add_f32 v[{112+2*j}:{113+2*j}], v[{112+2*j}:{113+2*j}], v[24:25] op_sel_hi:[1,0] neg_lo:[0,1] neg_hi:[0,1]")
        for j in range(8): A(f"v_cvt_pk_bf16_f32 v{96+j}, v{112+2*j}, v{113+2*j}")
        for j in range(8): unpack(A, 112+2*j, 96+j)
        for j in range(8): A(f"v_pk_mul_f32 v[{112+2*j}:{113+2*j}], v[{112+2*j}:{113+2*j}], v[24:25] op_sel:[0,1] op_sel_hi:[1,1]")
        for j in range(8): A(f"v_cvt_pk_bf16_f32 v{96+j}, v{112+2*j}, v{113+2*j}")
        for j in range(8): unpack(A, 112+2*j, 96+j)
        A("v_mov_b32 v14, 0x3f803f80")
        A("v_lshlrev_b32 v9, 7, v8")
        A("s_lshl_b32 s19, s16, 4")
        A("s_lshl_b32 s30, s6, 3")
        A("s_add_u32 s19, s19, s30")
        A(f"s_add_u32 s30, s19, 0x{ST1:x}")
    else:
        for j in range(8): unpack(A, 112+2*j, 104+j)
        for j in range(8): unpack(A, 128+2*j, 96+j)
        srd(A, 36, 34, 2048*1024)
        A("v_lshlrev_b32 v9, 10, v8")
        A("v_lshrrev_b32 v14, 5, v3")
        A("v_lshl_add_u32 v9, v14, 4, v9")
        A("s_lshl_b32 s19, s16, 7")
        A("s_lshl_b32 s30, s6, 6")
        A("s_add_u32 s30, s30, s19")
    A("s_waitcnt lgkmcnt(0)")
    A("s_barrier")
    A.stamp(11)
    for j in range(4): A(f"ds_read_b128 v[{64+4*j}:{67+4*j}], v31 offset:{1024*j}")
    A("s_waitcnt lgkmcnt(0)")
    for j in range(8): A(f"v_pk_add_f32 v[{ACC+2*j}:{ACC+2*j+1}], v[{ACC+2*j}:{ACC+2*j+1}], v[{64+2*j}:{65+2*j}]")
    for j in range(8): A(f"v_cvt_pk_bf16_f32 v{80+j}, v{ACC+2*j}, v{ACC+2*j+1}")
    for j in range(8): unpack(A, ACC+2*j, 80+j)
    for j in range(8): A(f"v_pk_add_f32 v[{ACC+2*j}:{ACC+2*j+1}], v[{ACC+2*j}:{ACC+2*j+1}], v[{112+2*j}:{113+2*j}]")
    for j in range(8): A(f"v_cvt_pk_bf16_f32 v{80+j}, v{ACC+2*j}, v{ACC+2*j+1}")
    if not is4:
        A("buffer_store_dwordx4 v[80:83], v1, s[8:11], s27 offen")
        A("buffer_store_dwordx4 v[84:87], v1, s[8:11], s27 offen offset:1024")
        for j in range(8):
            A(f"v_dot2_f32_bf16 v16, v{80+j}, v14, {'0' if j == 0 else 'v16'}")
            A(f"v_dot2_f32_bf16 v17, v{80+j}, v{80+j}, {'0' if j == 0 else 'v17'}")
        half_sum(A, [16, 17], [18, 19])
        A("buffer_store_dwordx2 v[16:17], v9, s[8:11], s30 offen")
    else:
        for j in range(8): unpack(A, ACC+2*j, 80+j)
        for j in range(8): A(f"v_pk_add_f32 v[{ACC+2*j}:{ACC+2*j+1}], v[{ACC+2*j}:{ACC+2*j+1}], v[{128+2*j}:{129+2*j}]")
        for j in range(8): A(f"v_cvt_pk_bf16_f32 v{80+j}, v{ACC+2*j}, v{ACC+2*j+1}")
        for q in range(2):
            A(f"v_permlane32_swap_b32 v{80+4*q}, v{82+4*q}")
            A(f"v_permlane32_swap_b32 v{81+4*q}, v{83+4*q}")
            A(f"buffer_store_dwordx4 v[{80+4*q}:{83+4*q}], v9, s[36:39], s30 offen offset:{32*q}")
    A.label(f"{P}_end")
    A.stamp(12)
    A.endpgm()
    return (name, (256,1,1), 256, EXB + 4*EXS, kernel_desc(name, 192, 44))

def gen_k4(A):
    name = "gemm3_kernel"
    LA = 4
    kernel_begin(A, name)
    A("s_cmp_ge_u32 s2, 240")
    A("s_cbranch_scc1 K4_end")
    A("s_load_dwordx2 s[12:13], s[0:1], 80")
    A("s_load_dwordx2 s[14:15], s[0:1], 112")
    A("v_lshrrev_b32 v2, 6, v0")
    A("v_and_b32 v3, 63, v0")
    A("v_readfirstlane_b32 s4, v2")
    A("v_lshlrev_b32 v1, 4, v3")
    A("s_lshr_b32 s16, s2, 4")
    A("s_and_b32 s17, s2, 7")
    A("s_lshl_b32 s17, s17, 1")
    A("s_bfe_u32 s18, s2, 0x10003")
    A("s_add_u32 s17, s17, s18")
    A("s_lshl_b32 s28, s17, 2")
    A("s_add_u32 s28, s28, s4")
    for i in range(3):
        A(f"v_add_u32 v8, {64*i}, v3")
        A("v_mul_u32_u24 v9, 0x5556, v8")
        A("v_lshrrev_b32 v9, 18, v9")
        A(f"v_mul_u32_u24 v{4+i}, {2752-192}, v9")
        A(f"v_add_u32 v{4+i}, v{4+i}, v1")
    A("s_mul_i32 s24, s16, 192")
    A(f"s_mul_i32 s19, s4, {16*2752}")
    A("s_add_u32 s24, s24, s19")
    A("s_lshl_b32 s25, s28, 15")
    A(f"s_add_u32 s25, s25, 0x{X1F:x}")
    A("s_mul_i32 s26, s4, 3072")
    A("s_waitcnt lgkmcnt(0)")
    A.stamp(0)
    srd(A, 8, 14, WS_BYTES)
    srd(A, 20, 12, 512*2752)
    def dma(c):
        A(f"s_add_u32 m0, s26, {c*12288}")
        A(f"buffer_load_dwordx4 a[{16*c}:{16*c+3}], v1, s[8:11], s25 offen")
        for i in range(3): A(f"buffer_load_dwordx4 v{4+i}, s[20:23], s24 offen offset:{1024*i} lds")
        for j in range(1, 4): A(f"buffer_load_dwordx4 a[{16*c+4*j}:{16*c+4*j+3}], v1, s[8:11], s25 offen offset:{1024*j}")
        A(f"s_add_u32 s24, s24, {64*2752}")
        A("s_add_u32 s25, s25, 4096")
    for c in range(LA): dma(c)
    A.stamp(1)
    A("v_bfe_u32 v8, v3, 2, 2")
    A("v_lshrrev_b32 v9, 5, v3")
    A("v_lshl_add_u32 v8, v9, 2, v8")
    A("v_mul_u32_u24 v10, 192, v8")
    A("v_bfe_u32 v8, v3, 4, 1")
    A("v_lshl_add_u32 v10, v8, 5, v10")
    A("v_and_b32 v8, 3, v3")
    A("v_lshl_add_u32 v10, v8, 3, v10")
    ACC = 32
    FR = [80, 92]
    def reads(ks, b):
        o = (ks % 16) * 3072
        for t in range(3):
            A(f"ds_read_b64_tr_b16 v[{b+4*t}:{b+4*t+1}], v10 offset:{o + 64*t}")
            A(f"ds_read_b64_tr_b16 v[{b+4*t+2}:{b+4*t+3}], v10 offset:{o + 64*t + 1536}")
    def compute(ks, b, w):
        for t in range(3):
            cc = "0" if ks == 0 else f"v[{ACC+16*t}:{ACC+16*t+15}]"
            A(f"s_waitcnt lgkmcnt({w + 4 - 2*t})")
            A(f"v_mfma_f32_32x32x16_bf16 v[{ACC+16*t}:{ACC+16*t+15}], v[{b+4*t}:{b+4*t+3}], a[{4*ks}:{4*ks+3}], {cc}")
    NE = 16
    for ks in range(32):
        c = ks // 4
        if ks % 4 == 0:
            out = min(LA - 1, 7 - c) * 7
            if c > 4: out += NE
            A(f"s_waitcnt vmcnt({out})")
            A("s_barrier")
            A.stamp(2 + c)
            if ks == 16: A("v_add_u32 v10, 49152, v10")
        reads(ks, FR[ks % 2])
        if ks > 0: compute(ks - 1, FR[(ks - 1) % 2], 6)
        if ks % 4 == 0:
            if c + LA < 8: dma(c + LA)
            if c == 4:
                A("v_and_b32 v8, 31, v3")
                A("v_lshlrev_b32 v8, 7, v8")
                A("v_lshl_add_u32 v8, v9, 6, v8")
                A("s_lshl_b32 s19, s28, 12")
                A(f"s_add_u32 s19, s19, 0x{ST1:x}")
                for j in range(4): A(f"buffer_load_dwordx4 v[{104+4*j}:{107+4*j}], v8, s[8:11], s19 offen offset:{16*j}")
                A("v_lshlrev_b32 v8, 4, v9")
                A("s_mul_i32 s19, s16, 384")
                A(f"s_add_u32 s19, s19, 0x{CS3:x}")
                for j in range(12): A(f"buffer_load_dwordx4 v[{120+4*j}:{123+4*j}], v8, s[8:11], s19 offen offset:{32*j}")
    compute(31, FR[1], 0)
    A.stamp(10)
    A("s_waitcnt vmcnt(12)")
    for st in (8, 4, 2):
        for i in range(0, st, 2):
            A(f"v_pk_add_f32 v[{104+i}:{105+i}], v[{104+i}:{105+i}], v[{104+st+i}:{105+st+i}]")
    half_sum(A, [104, 105], [106, 107])
    A(f"v_mul_f32 v16, {fhex(1/512)}, v104")
    A(f"v_mul_f32 v17, {fhex(1/512)}, v105")
    A("v_fma_f32 v17, -v16, v16, v17")
    A("v_max_f32 v17, 0, v17")
    ln_scale(A, 17, 18)
    round_bf16(A, 16)
    A(f"s_mov_b32 s32, {fhex(GK1)}"); A(f"s_mov_b32 s33, {fhex(GK1)}")
    A(f"v_mov_b32 v22, {fhex(GK0)}"); A(f"v_mov_b32 v23, {fhex(GK0)}")
    A(f"s_mul_i32 s27, s28, {86*1024}")
    A(f"s_mul_i32 s19, s16, {6*1024}")
    A("s_add_u32 s27, s27, s19")
    A(f"s_add_u32 s27, s27, 0x{H3F:x}")
    A("s_waitcnt vmcnt(0)")
    for t in range(3):
        a = ACC + 16*t; cs = 120 + 16*t
        for j in range(8): A(f"v_pk_fma_f32 v[{a+2*j}:{a+2*j+1}], v[{cs+2*j}:{cs+2*j+1}], v[16:17], v[{a+2*j}:{a+2*j+1}] op_sel_hi:[1,0,1] neg_lo:[0,1,0] neg_hi:[0,1,0]")
        for j in range(8): A(f"v_pk_mul_f32 v[{a+2*j}:{a+2*j+1}], v[{a+2*j}:{a+2*j+1}], v[18:19] op_sel_hi:[1,0]")
        o = 80 + 8*t
        gelu_pairs(A, [a+2*j for j in range(8)], [cs+2*j for j in range(8)], [o+j for j in range(8)], 32, 22)
        A(f"buffer_store_dwordx4 v[{o}:{o+3}], v1, s[8:11], s27 offen")
        A(f"buffer_store_dwordx4 v[{o+4}:{o+7}], v1, s[8:11], s27 offen offset:1024")
        if t < 2: A("s_add_u32 s27, s27, 2048")
        if t == 0:
            A("s_cmp_eq_u32 s16, 14")
            A("s_cbranch_scc1 K4_end")
    A.label("K4_end")
    A.stamp(12)
    A.endpgm()
    return (name, (240,1,1), 256, 98304, kernel_desc(name, 168+128, 40, accum=168))
```

```python
from gen_common import *
TROW = 528
TCH = 60 * TROW
KDB = 2 * TCH
KDCH = 5120
K0_LDS = KDB + 2 * KDCH
assert KDB % 32 == 0

def exp_acc(A, d, x, t0, t1, sL2E, sLO, sLN2):
    A(f"v_mul_f32 v{t0}, s{sL2E}, v{x}")
    A(f"v_fma_f32 v{t1}, v{x}, s{sL2E}, -v{t0}")
    A(f"v_fma_f32 v{t1}, v{x}, s{sLO}, v{t1}")
    A(f"v_exp_f32 v{d}, v{t0}")
    A(f"v_mul_f32 v{t1}, s{sLN2}, v{t1}")
    A(f"v_fma_f32 v{d}, v{d}, v{t1}, v{d}")

def kgen_role(A):
    A("s_load_dwordx8 s[4:11], s[0:1], 8")
    A("s_load_dwordx2 s[12:13], s[0:1], 40")
    A("s_load_dwordx2 s[14:15], s[0:1], 112")
    A("s_lshl_b32 s3, s2, 9")
    A("v_lshl_add_u32 v1, v0, 1, s3")
    A("v_lshrrev_b32 v3, 7, v0")
    A("s_lshl_b32 s16, s2, 2")
    A("v_lshl_add_u32 v2, v3, 1, s16")
    A("s_waitcnt lgkmcnt(0)")
    A.stamp(0)
    A("global_load_ushort v4, v1, s[4:5]")
    A("global_load_ushort v8, v2, s[12:13]")
    A("global_load_ushort v5, v1, s[6:7]")
    A("global_load_ushort v6, v1, s[8:9]")
    A("global_load_ushort v7, v1, s[10:11]")
    A(f"s_mov_b32 s20, {fhex(L2E_HI)}")
    A(f"s_mov_b32 s21, {fhex(L2E_LO)}")
    A(f"s_mov_b32 s22, {fhex(LN2)}")
    A(f"s_mov_b32 s23, {TCH}")
    A(f"s_mov_b32 s24, {KDCH}")
    A(f"s_mov_b32 s25, {TROW}")
    A("v_and_b32 v9, 127, v0")
    A("v_cmp_gt_u32 vcc, 8, v9")
    A("v_lshlrev_b32 v10, 4, v9")
    A("v_sub_u32 v10, 2032, v10")
    A("v_or_b32 v11, 128, v10")
    A("v_ffbh_u32 v11, v11")
    A("v_sub_u32 v11, 25, v11")
    A("v_mov_b32 v12, -1")
    A("v_lshlrev_b32 v12, v11, v12")
    A("v_not_b32 v13, v12")
    A("v_lshrrev_b32 v13, 1, v13")
    A("v_mul_lo_u32 v14, v3, s24")
    A(f"v_add_u32 v14, {KDB}, v14")
    A("v_lshl_add_u32 v15, v10, 1, v14")
    for i in range(16):
        A(f"v_add_u32 v16, {2*i}, v15")
        A(f"v_bfe_u32 v17, v16, v11, 1")
        A(f"v_add3_u32 v16, v16, v13, v17")
        A(f"v_and_b32 v{40+i}, v16, v12")
    A("v_mul_lo_u32 v37, v3, s23")
    A("v_lshl_add_u32 v36, v9, 2, v37")
    A("v_and_b32 v16, 15, v0")
    A("v_mul_lo_u32 v17, v16, s25")
    A("v_bfe_u32 v18, v0, 4, 2")
    A("v_lshl_add_u32 v17, v18, 4, v17")
    A("v_add_u32 v38, v17, v37")
    A("v_bfe_u32 v19, v0, 6, 1")
    A(f"v_mul_u32_u24 v20, {16*TROW}, v19")
    A("v_add_u32 v39, v38, v20")
    A("v_lshl_add_u32 v16, v19, 4, v16")
    A("v_lshl_add_u32 v16, v16, 4, v14")
    A("v_and_b32 v20, 1, v18")
    A("v_lshrrev_b32 v21, 1, v18")
    A("v_lshl_add_u32 v56, v20, 1, v16")
    A("v_lshl_add_u32 v56, v21, 9, v56")
    A("v_lshl_add_u32 v57, v20, 3, v16")
    A("v_lshl_add_u32 v57, v21, 11, v57")
    A(f"s_mov_b32 s26, {RS}")
    A("v_lshrrev_b32 v16, 1, v2")
    A("v_mul_lo_u32 v16, v16, s26")
    A(f"v_add_u32 v16, 0x{KR:x}, v16")
    A("v_lshl_add_u32 v58, v9, 5, v16")
    A("v_lshl_add_u32 v59, v9, 4, v16")
    A("v_add_u32 v59, 4096, v59")
    A.stamp(1)
    A("s_waitcnt vmcnt(3)")
    A.stamp(2)
    A("v_lshlrev_b32 v4, 16, v4")
    A("v_lshlrev_b32 v8, 16, v8")
    exp_acc(A, 10, 4, 16, 17, 20, 21, 22)
    exp_acc(A, 11, 8, 18, 19, 20, 21, 22)
    A("v_cvt_pk_bf16_f32 v10, v10, v11")
    A("v_and_b32 v11, 0xffff0000, v10")
    A("v_lshlrev_b32 v10, 16, v10")
    A("s_waitcnt vmcnt(0)")
    A("v_lshlrev_b32 v5, 16, v5")
    A("v_lshlrev_b32 v6, 16, v6")
    A("v_lshlrev_b32 v7, 16, v7")
    A("v_mul_f32 v10, v10, v11")
    A("v_mul_f32 v5, v5, v11")
    A("v_add_f32 v11, v11, v11")
    A(f"v_mul_f32 v10, {fhex(-L2E)}, v10")
    A("v_mul_f32 v5, 0.15915494, v5")
    A("v_mul_f32 v20, v6, v11")
    A("v_mul_f32 v21, v7, v11")
    for (d, p) in ((14, 8.0), (12, 1.0), (16, 256.0)):
        A(f"v_mul_f32 v18, {fhex(p)}, v10")
        A(f"v_mul_f32 v19, {fhex(p)}, v5")
        A("v_exp_f32 v18, v18")
        A("v_fract_f32 v19, v19")
        A(f"v_cos_f32 v{d}, v19")
        A(f"v_sin_f32 v{d+1}, v19")
        A(f"v_mul_f32 v{d}, v{d}, v18")
        A(f"v_mul_f32 v{d+1}, v{d+1}, v18")
    A.stamp(3)
    def xrow(p):
        for rt, g, f in ((0, (0,2,4,6), (0,1,256)), (1, (0,256,512,768), (512,516,1536))):
            for q, ff in enumerate(f):
                for reg, gg in enumerate(g):
                    if ff + gg == p: return 16*rt + 4*q + reg
        raise KeyError(p)
    tmp = [60, 61, 62, 63]; tcount = [0]
    def emit_store(reg, row, neg):
        t = tmp[tcount[0] % 4]; tcount[0] += 1
        return (f"v_cvt_pk_bf16_f32 v{t}, v{reg}, {'-' if neg else ''}v{reg+1}", f"ds_write_b32 v36, v{t} offset:{row*TROW}")
    seq = []
    for p in range(1, 8): seq.append((20+2*p, 20+2*(p-1), 12, xrow(p), True))
    seq.append((22, 20, 16, xrow(256), True)); seq.append((26, 24, 16, xrow(258), True))
    seq.append((30, 28, 16, xrow(260), True)); seq.append((34, 32, 16, xrow(262), True))
    seq.append((20, 22, 16, xrow(512), True)); seq.append((28, 30, 16, xrow(516), True))
    seq.append((22, 20, 16, xrow(768), True)); seq.append((30, 28, 16, xrow(772), True))
    seq.append((20, 22, 16, xrow(1024), True)); seq.append((22, 20, 16, xrow(1280), True))
    seq.append((20, 22, 16, xrow(1536), True)); seq.append((22, 20, 16, xrow(1792), True))
    seq.append((20, 22, 16, xrow(2048), True))
    eseq = []
    prev = 14
    for j in range(2, 32):
        d = 4 if j % 2 == 0 else 6
        eseq.append((d, prev, 14, 28 + j, False)); prev = d
    for s in emit_store(20, xrow(0), True): A(s)
    A("v_mov_b32 v18, 0x3f80")
    A(f"ds_write_b32 v36, v18 offset:{28*TROW}")
    for s in emit_store(14, 29, False): A(s)
    items = []
    i = j = 0
    while i < len(seq) or j < len(eseq):
        pair = []
        if j < len(eseq): pair.append(eseq[j]); j += 1
        if i < len(seq): pair.append(seq[i]); i += 1
        cm = [cmul(A, d, a, w) for (d, a, w, r, n) in pair]
        for c in cm: A(c[0])
        for c in cm: A(c[1])
        st = [emit_store(d, r, n) for (d, a, w, r, n) in pair]
        for s in st: A(s[0])
        for s in st: A(s[1])
    A("s_waitcnt lgkmcnt(0)")
    A("s_barrier")
    A.stamp(4)
    for s in range(8):
        A(f"ds_read_b128 v[{4+4*s}:{7+4*s}], v39 offset:{28*TROW + 64*s}")
        A(f"ds_read_b128 v[{64+4*s}:{67+4*s}], v38 offset:{64*s}")
        A(f"ds_read_b128 v[{96+4*s}:{99+4*s}], v38 offset:{16*TROW + 64*s}")
        if s == 3: pass
    for s in range(8):
        A(f"s_waitcnt lgkmcnt({min(15, 3*(7-s))})")
        c0 = "0" if s == 0 else "v[60:63]"
        c1 = "0" if s == 0 else "v[128:131]"
        A(f"v_mfma_f32_16x16x32_bf16 v[60:63], v[{64+4*s}:{67+4*s}], v[{4+4*s}:{7+4*s}], {c0}")
        A(f"v_mfma_f32_16x16x32_bf16 v[128:131], v[{96+4*s}:{99+4*s}], v[{4+4*s}:{7+4*s}], {c1}")
    A("v_cvt_pk_bf16_f32 v60, v60, v61")
    A("v_cvt_pk_bf16_f32 v62, v62, v63")
    A("ds_write_b16 v56, v60 offset:0")
    A("ds_write_b16_d16_hi v56, v60 offset:4")
    A("ds_write_b16 v56, v62 offset:8")
    A("ds_write_b16_d16_hi v56, v62 offset:12")
    A("v_cvt_pk_bf16_f32 v128, v128, v129")
    A("v_cvt_pk_bf16_f32 v130, v130, v131")
    A("ds_write_b16 v57, v128 offset:1024")
    A("ds_write_b16_d16_hi v57, v128 offset:1536")
    A("ds_write_b16 v57, v130 offset:2048")
    A("ds_write_b16_d16_hi v57, v130 offset:2560")
    A("v_mov_b32 v64, 0"); A("v_mov_b32 v65, 0"); A("v_mov_b32 v66, 0"); A("v_mov_b32 v67, 0")
    A("s_waitcnt lgkmcnt(0)")
    A("s_barrier")
    A.stamp(5)
    for j in range(8):
        A(f"ds_read_u16 v{4+j}, v{40+15-2*j}")
        A(f"ds_read_u16 v{12+j}, v{40+14-2*j}")
    A("s_waitcnt lgkmcnt(8)")
    for j in range(4): A(f"v_lshl_or_b32 v{20+j}, v{12+j}, 16, v{4+j}")
    A("global_store_dwordx4 v58, v[20:23], s[14:15]")
    A("s_waitcnt lgkmcnt(0)")
    for j in range(4, 8): A(f"v_lshl_or_b32 v{20+j}, v{12+j}, 16, v{4+j}")
    A("global_store_dwordx4 v58, v[24:27], s[14:15] offset:16")
    A("s_and_saveexec_b64 s[28:29], vcc")
    A("s_cbranch_execz K0_end")
    A("global_store_dwordx4 v59, v[64:67], s[14:15]")
    A("s_branch K0_end")

def wave_sum(A, regs):
    for mod in ("row_shr:1", "row_shr:2", "row_shr:4", "row_shr:8"):
        for r in regs: A(f"v_add_f32_dpp v{r}, v{r}, v{r} {mod} row_mask:0xf bank_mask:0xf bound_ctrl:0")
    for r in regs: A(f"v_add_f32_dpp v{r}, v{r}, v{r} row_bcast:15 row_mask:0xa bank_mask:0xf")
    for r in regs: A(f"v_add_f32_dpp v{r}, v{r}, v{r} row_bcast:31 row_mask:0xc bank_mask:0xf")

def ln_role(A):
    A("s_load_dwordx2 s[4:5], s[0:1], 0")
    A("s_load_dwordx2 s[14:15], s[0:1], 112")
    A("s_and_b32 s6, s2, 7")
    A("s_lshl_b32 s6, s6, 5")
    A("s_bfe_u32 s7, s2, 0x50003")
    A("s_add_u32 s6, s6, s7")
    A("s_lshl_b32 s7, s6, 13")
    A("v_lshrrev_b32 v2, 6, v0")
    A("v_and_b32 v3, 63, v0")
    A("v_lshl_add_u32 v1, v2, 11, s7")
    A("v_lshl_add_u32 v1, v3, 4, v1")
    A("s_waitcnt lgkmcnt(0)")
    A.stamp(0)
    A("global_load_dwordx4 v[4:7], v1, s[4:5]")
    A("global_load_dwordx4 v[8:11], v1, s[4:5] offset:1024")
    A("v_lshlrev_b32 v40, 11, v2")
    A("v_lshl_add_u32 v40, v3, 5, v40")
    A("v_lshlrev_b32 v41, 2, v0")
    A(f"s_mov_b32 s8, {RS}")
    A("v_mul_lo_u32 v42, v0, s8")
    A("s_and_b32 s9, s6, 3")
    A("s_lshl_b32 s9, s9, 10")
    A("s_lshr_b32 s10, s6, 2")
    A("s_lshl_b32 s10, s10, 4")
    A("s_add_u32 s9, s9, s10")
    A("v_add_u32 v42, s9, v42")
    A(f"v_add_u32 v43, {256*RS}, v42")
    add64(A, 16, 14, XT)
    A("s_mov_b32 s20, 0x05040100")
    A("s_mov_b32 s21, 0x07060302")
    A("v_mov_b32 v44, 0x3f803f80")
    A("s_waitcnt vmcnt(0)")
    A.stamp(2)
    for i in range(4):
        c = lambda r: "0" if i == 0 else f"v{r}"
        A(f"v_dot2_f32_bf16 v12, v{4+i}, v44, {c(12)}")
        A(f"v_dot2_f32_bf16 v13, v{4+i}, v{4+i}, {c(13)}")
        A(f"v_dot2_f32_bf16 v14, v{8+i}, v44, {c(14)}")
        A(f"v_dot2_f32_bf16 v15, v{8+i}, v{8+i}, {c(15)}")
    for i in range(4):
        A(f"v_perm_b32 v{48+2*i}, v{8+i}, v{4+i}, s20")
        A(f"v_perm_b32 v{49+2*i}, v{8+i}, v{4+i}, s21")
    A("ds_write_b128 v40, v[48:51] offset:8192")
    A("ds_write_b128 v40, v[52:55] offset:8208")
    wave_sum(A, [12, 13, 14, 15])
    A(f"v_mul_f32 v16, {fhex(1/512)}, v12")
    A(f"v_mul_f32 v17, {fhex(1/512)}, v14")
    A(f"v_mul_f32 v13, {fhex(1/512)}, v13")
    A(f"v_mul_f32 v15, {fhex(1/512)}, v15")
    A("v_fma_f32 v13, -v16, v16, v13")
    A("v_fma_f32 v15, -v17, v17, v15")
    A("v_max_f32 v13, 0, v13")
    A("v_max_f32 v15, 0, v15")
    A("v_cvt_pk_bf16_f32 v16, v16, v17")
    A("v_cvt_pk_bf16_f32 v13, v13, v15")
    A("v_and_b32 v15, 0xffff0000, v13")
    A("v_lshlrev_b32 v13, 16, v13")
    A(f"v_add_f32 v13, {fhex(EPS)}, v13")
    A(f"v_add_f32 v15, {fhex(EPS)}, v15")
    A("v_cvt_pk_bf16_f32 v13, v13, v15")
    A("v_and_b32 v15, 0xffff0000, v13")
    A("v_lshlrev_b32 v13, 16, v13")
    A("v_sqrt_f32 v13, v13")
    A("v_sqrt_f32 v15, v15")
    A("v_cvt_pk_bf16_f32 v13, v13, v15")
    A("v_and_b32 v15, 0xffff0000, v13")
    A("v_lshlrev_b32 v13, 16, v13")
    A("v_rcp_f32 v13, v13")
    A("v_rcp_f32 v15, v15")
    A("v_and_b32 v17, 0xffff0000, v16")
    A("v_lshlrev_b32 v16, 16, v16")
    A("v_readlane_b32 s24, v16, 63")
    A("v_readlane_b32 s25, v17, 63")
    A("v_readlane_b32 s26, v13, 63")
    A("v_readlane_b32 s27, v15, 63")
    for i in range(8):
        A(f"v_lshlrev_b32 v{20+2*i}, 16, v{48+i}")
        A(f"v_and_b32 v{21+2*i}, 0xffff0000, v{48+i}")
    for i in range(8):
        A(f"v_pk_add_f32 v[{20+2*i}:{21+2*i}], v[{20+2*i}:{21+2*i}], s[24:25] neg_lo:[0,1] neg_hi:[0,1]")
    for i in range(8):
        A(f"v_cvt_pk_bf16_f32 v{56+i}, v{20+2*i}, v{21+2*i}")
    for i in range(8):
        A(f"v_lshlrev_b32 v{20+2*i}, 16, v{56+i}")
        A(f"v_and_b32 v{21+2*i}, 0xffff0000, v{56+i}")
    for i in range(8):
        A(f"v_pk_mul_f32 v[{20+2*i}:{21+2*i}], v[{20+2*i}:{21+2*i}], s[26:27]")
    for i in range(8):
        A(f"v_cvt_pk_bf16_f32 v{56+i}, v{20+2*i}, v{21+2*i}")
    A("ds_write_b128 v40, v[56:59]")
    A("ds_write_b128 v40, v[60:63] offset:16")
    A("s_waitcnt lgkmcnt(0)")
    A("s_barrier")
    A.stamp(4)
    k = 0
    for a in range(2):
        for hh in range(2):
            o = a*32 + hh*4
            r = 4 + 4*k
            A(f"ds_read2st64_b32 v[{r}:{r+1}], v41 offset0:{o} offset1:{o+8}")
            A(f"ds_read2st64_b32 v[{r+2}:{r+3}], v41 offset0:{o+16} offset1:{o+24}")
            k += 1
    A("s_waitcnt lgkmcnt(6)")
    A("global_store_dwordx4 v42, v[4:7], s[14:15]")
    A("s_waitcnt lgkmcnt(4)")
    A("global_store_dwordx4 v43, v[8:11], s[14:15]")
    A("s_waitcnt lgkmcnt(2)")
    A("global_store_dwordx4 v42, v[12:15], s[16:17]")
    A("s_waitcnt lgkmcnt(0)")
    A("global_store_dwordx4 v43, v[16:19], s[16:17]")

def gen_k0(A):
    kernel_begin(A, "prep_kernel")
    A("s_cmp_ge_u32 s2, 256")
    A("s_cbranch_scc1 K0_ln")
    kgen_role(A)
    A.label("K0_ln")
    A("s_cmp_ge_u32 s2, 512")
    A("s_cbranch_scc1 K0_end")
    ln_role(A)
    A.label("K0_end")
    A.stamp(12)
    A.endpgm()
    return ("prep_kernel", (512,1,1), 256, K0_LDS, kernel_desc("prep_kernel", 132, 40))
```

```python
from gen_common import *
CPS = 4160
KCH = 8 * CPS
UB = 2 * KCH
UPL = 1536
UCH = 4 * UPL
EXB = UB + 2 * UCH
K1_LDS = EXB
NCS = 30

def conv_role(A):
    A("s_load_dwordx2 s[14:15], s[0:1], 112")
    A("s_load_dwordx2 s[12:13], s[0:1], 48")
    A("v_lshrrev_b32 v2, 6, v0")
    A("v_and_b32 v3, 63, v0")
    A("v_readfirstlane_b32 s4, v2")
    A("v_lshlrev_b32 v1, 4, v3")
    A("s_mov_b32 s5, s2")
    A("s_lshr_b32 s6, s4, 1")
    A("s_and_b32 s7, s4, 1")
    A("s_lshl_b32 s5, s5, 1")
    A("s_add_u32 s5, s5, s6")
    A(f"s_mul_i32 s16, s5, {RS}")
    A(f"s_mul_i32 s17, s6, {KCH}")
    A(f"s_mul_i32 s18, s7, {4*CPS}")
    A("s_add_u32 s18, s18, s17")
    A("s_lshl_b32 s19, s7, 3")
    A("s_add_u32 s19, s19, s16")
    A(f"s_add_u32 s19, s19, 0x{KR:x}")
    A(f"s_mul_i32 s20, s6, {UCH}")
    A(f"s_add_u32 s20, s20, {UB}")
    A(f"s_mul_i32 s21, s7, {2*UPL}")
    A("s_add_u32 s21, s21, s20")
    A("s_add_u32 s21, s21, 512")
    A("s_lshl_b32 s22, s7, 11")
    A("s_add_u32 s22, s22, s16")
    A("s_waitcnt lgkmcnt(0)")
    A.stamp(0)
    srd(A, 8, 14, WS_BYTES)
    A("s_mov_b32 m0, s21")
    A("buffer_load_dwordx4 v1, s[8:11], s22 offen lds")
    A(f"s_add_u32 m0, s21, {UPL-1024}")
    A("buffer_load_dwordx4 v1, s[8:11], s22 offen offset:1024 lds")
    for half in range(2):
        for c in range(4):
            A(f"s_add_u32 m0, s18, {c*CPS}")
            A(f"s_add_u32 s23, s19, {2*c}")
            A(f"buffer_load_dwordx4 v1, s[8:11], s23 offen offset:{half*1024} lds")
            A(f"buffer_load_dwordx4 v1, s[8:11], s23 offen offset:{half*1024+2048} lds")
    A("v_and_b32 v4, 31, v3")
    A("v_lshrrev_b32 v5, 5, v3")
    A("v_lshlrev_b32 v6, 4, v4")
    A("v_lshl_add_u32 v6, v5, 3, v6")
    A("s_lshl_b32 s24, s7, 9")
    A("s_add_u32 s25, s24, s16")
    A(f"s_add_u32 s25, s25, 0x{XT:x}")
    for g in range(4):
        A(f"buffer_load_dwordx2 v[{100+2*g}:{101+2*g}], v6, s[8:11], s25 offen offset:{g*1024}")
    A("s_lshl_b32 s26, s5, 1")
    A("v_mov_b32 v7, s26")
    A("global_load_ushort v108, v7, s[12:13]")
    A("v_mov_b32 v8, 0"); A("v_mov_b32 v9, 0"); A("v_mov_b32 v10, 0"); A("v_mov_b32 v11, 0")
    A("v_bfe_u32 v12, v3, 2, 2")
    A(f"v_mul_u32_u24 v12, {CPS}, v12")
    A("v_and_b32 v13, 3, v3")
    A("v_lshl_add_u32 v12, v13, 4, v12")
    A("v_add_u32 v12, s18, v12")
    A("ds_write_b128 v12, v[8:11] offset:4096")
    A(f"v_mul_u32_u24 v12, {UPL}, v5")
    A("v_lshl_add_u32 v12, v4, 4, v12")
    A("s_sub_u32 s27, s21, 512")
    A("v_add_u32 v12, s27, v12")
    A("ds_write_b128 v12, v[8:11]")
    A("v_sub_u32 v12, 31, v4")
    A("v_and_b32 v13, 7, v12")
    A(f"v_mul_u32_u24 v13, {CPS}, v13")
    A("v_lshrrev_b32 v12, 3, v12")
    A("v_add_u32 v12, v12, v5")
    A("v_lshl_add_u32 v13, v12, 4, v13")
    A("s_lshl_b32 s27, s7, 5")
    A("s_add_u32 s27, s27, s17")
    A("v_add_u32 v20, s27, v13")
    A(f"v_mul_u32_u24 v13, {UPL}, v5")
    A("v_lshl_add_u32 v13, v4, 4, v13")
    A("s_sub_u32 s27, s21, 512")
    A("v_add_u32 v21, s27, v13")
    A("s_add_u32 s27, s20, s24")
    A("v_add_u32 v22, s27, v6")
    A("s_xor_b32 s27, s4, 1")
    A("s_lshl_b32 s27, s27, 12")
    A("v_add_u32 v23, s27, v1")
    A("s_lshl_b32 s27, s4, 12")
    A("v_add_u32 v24, s27, v1")
    A("v_lshlrev_b32 v25, 6, v4")
    A("v_lshl_add_u32 v25, v5, 3, v25")
    A("s_lshl_b32 s28, s7, 11")
    A("s_add_u32 s28, s28, s16")
    A(f"s_add_u32 s28, s28, 0x{HT:x}")
    A.stamp(1)
    A("s_waitcnt vmcnt(13) lgkmcnt(0)")
    A("s_barrier")
    A.stamp(2)
    ACC0, ACC1 = 32, 48
    bufs = [64, 80]
    def reads(m, b):
        A(f"ds_read_b128 v[{b}:{b+3}], v20 offset:{(63-m)*64}")
        A(f"ds_read_b128 v[{b+8}:{b+11}], v21 offset:{(32-m)*16}")
        A(f"ds_read_b128 v[{b+12}:{b+15}], v21 offset:{(64-m)*16}")
        A(f"ds_read_b128 v[{b+4}:{b+7}], v20 offset:{(31-m)*64}")
    reads(31, bufs[0])
    for it, m in enumerate(range(31, -1, -1)):
        b = bufs[it % 2]; nb = bufs[(it+1) % 2]
        if m == 17:
            A.stamp(3)
            A("s_waitcnt vmcnt(5)")
            A("s_barrier")
            A.stamp(4)
        if m > 0:
            reads(m-1, nb)
            w = 4
        else: w = 0
        c0 = "0" if it == 0 else f"v[{ACC0}:{ACC0+15}]"
        c1 = "0" if it == 0 else f"v[{ACC1}:{ACC1+15}]"
        A(f"s_waitcnt lgkmcnt({w+2})")
        A(f"v_mfma_f32_32x32x16_bf16 v[{ACC0}:{ACC0+15}], v[{b}:{b+3}], v[{b+8}:{b+11}], {c0}")
        A(f"s_waitcnt lgkmcnt({w+1})")
        A(f"v_mfma_f32_32x32x16_bf16 v[{ACC1}:{ACC1+15}], v[{b}:{b+3}], v[{b+12}:{b+15}], {c1}")
        A(f"s_waitcnt lgkmcnt({w})")
        A(f"v_mfma_f32_32x32x16_bf16 v[{ACC1}:{ACC1+15}], v[{b+4}:{b+7}], v[{b+8}:{b+11}], v[{ACC1}:{ACC1+15}]")
    A.stamp(5)
    for g in range(4):
        A(f"ds_read_b64 v[{110+2*g}:{111+2*g}], v22 offset:{512+g*UPL}")
    A("s_barrier")
    A("s_cmp_eq_u32 s7, 0")
    A("s_cbranch_scc1 K1_s0")
    A("s_nop 7")
    for j in range(4): A(f"ds_write_b128 v23, v[{ACC0+4*j}:{ACC0+4*j+3}] offset:{1024*j}")
    A("s_waitcnt lgkmcnt(0)")
    for j in range(16): A(f"v_mov_b32 v{ACC0+j}, v{ACC1+j}")
    A("s_branch K1_join")
    A.label("K1_s0")
    A("s_nop 7")
    for j in range(4): A(f"ds_write_b128 v23, v[{ACC1+4*j}:{ACC1+4*j+3}] offset:{1024*j}")
    A.label("K1_join")
    A("s_waitcnt vmcnt(0) lgkmcnt(0)")
    A("s_barrier")
    A.stamp(6)
    for j in range(4): A(f"ds_read_b128 v[{64+4*j}:{67+4*j}], v24 offset:{1024*j}")
    A("v_lshlrev_b32 v108, 16, v108")
    A("v_mov_b32 v109, v108")
    for j in range(8):
        A(f"v_lshlrev_b32 v{80+2*j}, 16, v{110+j}")
        A(f"v_and_b32 v{81+2*j}, 0xffff0000, v{110+j}")
    for j in range(8): A(f"v_pk_mul_f32 v[{80+2*j}:{81+2*j}], v[{80+2*j}:{81+2*j}], v[108:109]")
    for j in range(8): A(f"v_cvt_pk_bf16_f32 v{110+j}, v{80+2*j}, v{81+2*j}")
    for j in range(8):
        A(f"v_lshlrev_b32 v{80+2*j}, 16, v{110+j}")
        A(f"v_and_b32 v{81+2*j}, 0xffff0000, v{110+j}")
    for j in range(8):
        A(f"v_lshlrev_b32 v{48+2*j}, 16, v{100+j}")
        A(f"v_and_b32 v{49+2*j}, 0xffff0000, v{100+j}")
    A("s_waitcnt lgkmcnt(0)")
    for j in range(8): A(f"v_pk_add_f32 v[{32+2*j}:{33+2*j}], v[{32+2*j}:{33+2*j}], v[{64+2*j}:{65+2*j}]")
    def rnd():
        for j in range(8): A(f"v_cvt_pk_bf16_f32 v{110+j}, v{32+2*j}, v{33+2*j}")
        for j in range(8):
            A(f"v_lshlrev_b32 v{32+2*j}, 16, v{110+j}")
            A(f"v_and_b32 v{33+2*j}, 0xffff0000, v{110+j}")
    rnd()
    for j in range(8): A(f"v_pk_add_f32 v[{32+2*j}:{33+2*j}], v[{32+2*j}:{33+2*j}], v[{80+2*j}:{81+2*j}]")
    rnd()
    for j in range(8): A(f"v_pk_add_f32 v[{32+2*j}:{33+2*j}], v[{32+2*j}:{33+2*j}], v[{48+2*j}:{49+2*j}]")
    for g in range(4):
        A(f"v_cvt_pk_bf16_f32 v{110+2*g}, v{32+4*g}, v{33+4*g}")
        A(f"v_cvt_pk_bf16_f32 v{111+2*g}, v{34+4*g}, v{35+4*g}")
        A(f"buffer_store_dwordx2 v[{110+2*g}:{111+2*g}], v25, s[8:11], s28 offen offset:{16*g}")
    A.stamp(12)
    A.endpgm()

def colsum_role(A):
    A("s_sub_u32 s3, s2, 256")
    A("s_load_dwordx2 s[4:5], s[0:1], 64")
    A("s_load_dwordx2 s[6:7], s[0:1], 80")
    A("s_load_dwordx2 s[14:15], s[0:1], 112")
    A("s_cmp_lt_u32 s3, 8")
    A("s_movk_i32 s16, 2752")
    A("s_cselect_b32 s16, 1024, s16")
    A("s_cselect_b32 s18, 0, 8")
    A("s_sub_u32 s18, s3, s18")
    A("s_lshl_b32 s17, s16, 9")
    A("s_lshl_b32 s19, s3, 8")
    A("s_waitcnt lgkmcnt(0)")
    A("s_cmp_lt_u32 s3, 8")
    A("s_cselect_b32 s8, s4, s6")
    A("s_cselect_b32 s9, s5, s7")
    A("s_and_b32 s9, s9, 0xffff")
    A("s_mov_b32 s10, s17")
    A("s_mov_b32 s11, 0x20000")
    A("v_lshrrev_b32 v1, 3, v0")
    A("v_and_b32 v2, 7, v0")
    A("v_mul_lo_u32 v3, v1, s16")
    A("v_lshl_add_u32 v3, v2, 4, v3")
    A("s_lshl_b32 s20, s18, 7")
    A("s_lshl_b32 s21, s16, 5")
    for i in range(16):
        A(f"buffer_load_dwordx4 v[{16+4*i}:{19+4*i}], v3, s[8:11], s20 offen")
        A("s_add_u32 s20, s20, s21")
    for j in range(8): A(f"v_mov_b32 v{4+j}, 0")
    for i in range(16):
        A(f"s_waitcnt vmcnt({15-i})")
        for j in range(4):
            A(f"v_lshlrev_b32 v12, 16, v{16+4*i+j}")
            A(f"v_and_b32 v13, 0xffff0000, v{16+4*i+j}")
            A(f"v_pk_add_f32 v[{4+2*j}:{5+2*j}], v[{4+2*j}:{5+2*j}], v[12:13]")
    A("v_lshlrev_b32 v12, 5, v0")
    A("ds_write_b128 v12, v[4:7]")
    A("ds_write_b128 v12, v[8:11] offset:16")
    A("s_waitcnt lgkmcnt(0)")
    A("s_barrier")
    A("v_cmp_gt_u32 vcc, 64, v0")
    A("s_and_saveexec_b64 s[22:23], vcc")
    A("s_cbranch_execz K1_end")
    A("v_lshlrev_b32 v12, 2, v0")
    for i in range(16):
        A(f"ds_read2st64_b32 v[{16+2*i}:{17+2*i}], v12 offset0:{2*i} offset1:{2*i+1}")
    A("s_waitcnt lgkmcnt(0)")
    for st in (16, 8, 4, 2):
        for i in range(0, st, 2):
            A(f"v_pk_add_f32 v[{16+i}:{17+i}], v[{16+i}:{17+i}], v[{16+st+i}:{17+st+i}]")
    A("v_add_f32 v16, v16, v17")
    A(f"s_add_u32 s19, s19, 0x{CS1:x}")
    A("v_add_u32 v12, s19, v12")
    A("global_store_dword v12, v16, s[14:15]")

def gen_k1(A):
    kernel_begin(A, "conv_kernel")
    A("s_cmp_ge_u32 s2, 256")
    A("s_cbranch_scc1 K1_cs")
    conv_role(A)
    A.label("K1_cs")
    A(f"s_cmp_ge_u32 s2, {256+NCS}")
    A("s_cbranch_scc1 K1_end")
    colsum_role(A)
    A.label("K1_end")
    A.endpgm()
    return ("conv_kernel", (256+NCS,1,1), 256, K1_LDS, kernel_desc("conv_kernel", 120, 40))
```

```python
class Asm:
    def __init__(self):
        self.lines = []
        self.uid = 0
    def __call__(self, s):
        for l in s.split("\n"):
            self.lines.append("  " + l.strip() if l.strip() and not l.strip().endswith(":") else l.strip())
    def label(self, name): self.lines.append(name + ":")
    def newlabel(self, base="L"):
        self.uid += 1
        return f"{base}_{self.uid}"
    def c(self, s): self.lines.append("  ; " + s)
    prof = False
    kidx = -1
    lite = False
    dbgprof = False
    def stamp(self, i):
        if self.prof: self(f"s_memtime s[{64+2*i}:{65+2*i}]")
    def endpgm(self):
        if self.lite:
            lab = self.newlabel("Lprof")
            self("s_cmp_lg_u32 s2, 0")
            self(f"s_cbranch_scc1 {lab}")
            self("s_load_dwordx2 s[94:95], s[0:1], 112")
            self("s_mov_b64 exec, 1")
            self("s_waitcnt lgkmcnt(0)")
            self("v_mov_b32 v4, s60")
            self(f"v_mov_b32 v1, {0x1400000 + 4*self.kidx}")
            self("global_store_dword v1, v4, s[94:95]")
            self.label(lab)
        if self.prof:
            lab = self.newlabel("Lprof")
            self("s_waitcnt vmcnt(0)")
            self.stamp(13)
            self("s_memrealtime s[62:63]")
            self("s_load_dwordx2 s[94:95], s[0:1], 112")
            self("s_mov_b64 exec, 1")
            self("s_cmp_lg_u32 s59, 0")
            self(f"s_cbranch_scc1 {lab}")
            self("s_waitcnt lgkmcnt(0)")
            self("v_mov_b32 v4, s60"); self("v_mov_b32 v5, s62")
            for i in range(14):
                self(f"s_sub_u32 s{64+2*i}, s{64+2*i}, s92")
                self(f"v_mov_b32 v{6+i}, s{64+2*i}")
            self(f"s_lshl_b32 s58, s2, 6")
            self(f"s_add_u32 s58, s58, {0x1400000 + self.kidx*65536}")
            self("v_mov_b32 v1, s58")
            for j in range(4): self(f"global_store_dwordx4 v1, v[{4+4*j}:{7+4*j}], s[94:95] offset:{16*j}")
            if self.dbgprof:
                self("s_load_dwordx2 s[96:97], s[0:1], 104")
                self("s_waitcnt lgkmcnt(0)")
                self(f"s_add_u32 s96, s96, {512*(5-self.kidx)}")
                self("s_addc_u32 s97, s97, 0")
                self("v_not_b32 v4, v4")
                self(f"v_mov_b32 v1, {8*self.kidx}")
                self("global_atomic_umax v1, v4, s[96:97]")
                self("global_atomic_umax v1, v5, s[96:97] offset:4")
            self.label(lab)
        self("s_endpgm")
    def text(self): return "\n".join(self.lines) + "\n"

def vr(a, n=1):
    return f"v{a}" if n == 1 else f"v[{a}:{a+n-1}]"
def ar(a, n=1):
    return f"a{a}" if n == 1 else f"a[{a}:{a+n-1}]"
def sr(a, n=1):
    return f"s{a}" if n == 1 else f"s[{a}:{a+n-1}]"

def kernel_begin(A, name):
    A.lines.append(".text")
    A.lines.append(f".globl {name}")
    A.lines.append(".p2align 8")
    A.lines.append(f".type {name},@function")
    A.lines.append(f"{name}:")
    A.kidx += 1
    if A.lite: A("s_memrealtime s[60:61]")
    if A.prof:
        A("s_memrealtime s[60:61]")
        A("s_memtime s[92:93]")
        A("v_lshrrev_b32 v2, 6, v0")
        A("s_nop 0")
        A("v_readfirstlane_b32 s59, v2")
        for i in range(14): A(f"s_mov_b32 s{64+2*i}, 0")

PROF_ON = False
def kernel_desc(name, vgpr, sgpr=96, accum=None, kernarg=120):
    if Asm.prof or Asm.lite: sgpr = 100
    if accum is None: accum = (vgpr + 3) // 4 * 4
    return f""".section .rodata,"a"
.p2align 6
.amdhsa_kernel {name}
  .amdhsa_next_free_vgpr {vgpr}
  .amdhsa_next_free_sgpr {sgpr}
  .amdhsa_accum_offset {accum}
  .amdhsa_group_segment_fixed_size 0
  .amdhsa_kernarg_size {kernarg}
  .amdhsa_user_sgpr_count 2
  .amdhsa_user_sgpr_kernarg_segment_ptr 1
  .amdhsa_system_sgpr_workgroup_id_x 1
  .amdhsa_float_denorm_mode_32 3
  .amdhsa_float_denorm_mode_16_64 3
.end_amdhsa_kernel
"""
import struct
def f2u(x): return struct.unpack("<I", struct.pack("<f", x))[0]
def fhex(x): return f"0x{f2u(x):08x}"

def gen_delay(A, i, j, nk, mult=10):
    kernel_begin(A, "delay_kernel")
    A("s_cmp_lg_u32 s2, 0")
    A("s_cbranch_scc1 Ldelay_end")
    A("s_load_dwordx2 s[4:5], s[0:1], 112")
    A("s_waitcnt lgkmcnt(0)")
    A("s_add_u32 s4, s4, 0x1400000")
    A("s_addc_u32 s5, s5, 0")
    A("s_load_dwordx8 s[8:15], s[4:5], 0")
    A("s_waitcnt lgkmcnt(0)")
    A(f"s_mov_b32 s{8+nk}, s60")
    A(f"s_sub_u32 s20, s{8+j}, s{8+i}")
    A(f"s_mul_i32 s20, s20, {mult}")
    A("s_min_u32 s20, s20, 100000")
    A.label("Ldelay_loop")
    A("s_memrealtime s[22:23]")
    A("s_waitcnt lgkmcnt(0)")
    A("s_sub_u32 s22, s22, s60")
    A("s_cmp_lt_u32 s22, s20")
    A("s_cbranch_scc1 Ldelay_loop")
    A.label("Ldelay_end")
    A("s_endpgm")
    return ("delay_kernel", (1,1,1), 64, 0, kernel_desc("delay_kernel", 8, 100))
```

```python
import sys
from gen_common import *
from gen_k0 import gen_k0
from gen_k1 import gen_k1
from gen_gemm import gen_k2, gen_k35, gen_k4
import hazard
HDR = open("sequential_preLN__ssm_conv_s4d__mixer_s_mlp__prompt.s.ref").read().split("; Override launch")[0]
def build(extra_empty=0, delay=None):
    A = Asm()
    ks = [gen_k0(A), gen_k1(A), gen_k2(A), gen_k35(A, 2), gen_k4(A), gen_k35(A, 4)]
    launches = list(ks)
    if extra_empty:
        kernel_begin(A, "empty_kernel"); A("s_endpgm")
        e = ("empty_kernel", (256,1,1), 256, 0, kernel_desc("empty_kernel", 8, 16))
        ks.append(e); launches += [e]*extra_empty
    if delay is not None:
        e = gen_delay(A, delay[0], delay[1], len(ks)); ks.append(e); launches.append(e)
    body = hazard.fix(A.lines)
    txt = HDR
    for (n, g, b, lds, d) in launches:
        txt += f"; @launch kernel={n} grid=({g[0]},{g[1]},{g[2]}) block=({b},1,1) lds={lds}\n"
    txt += '.amdgcn_target "amdgcn-amd-amdhsa--gfx950"\n' + "\n".join(body) + "\n" + "".join(k[4] for k in ks)
    return txt
if __name__ == "__main__":
    out = sys.argv[1] if len(sys.argv) > 1 else "sequential_preLN__ssm_conv_s4d__mixer_s_mlp__prompt.s"
    extra = int(sys.argv[2]) if len(sys.argv) > 2 else 0
    Asm.prof = len(sys.argv) > 3 and sys.argv[3] in ("prof", "dbg")
    Asm.dbgprof = len(sys.argv) > 3 and sys.argv[3] == "dbg"
    delay = None
    if len(sys.argv) > 3 and sys.argv[3].startswith("delay"):
        Asm.lite = True
        delay = (int(sys.argv[4]), int(sys.argv[5]))
    open(out, "w").write(build(extra, delay))
```
